```python
import torch

def _softmax(x, axis=-1):
    return torch.softmax(x, dim=axis)
def _gelu(x):
    return torch.nn.functional.gelu(x, approximate="tanh")
def _silu(x):
    return torch.nn.functional.silu(x)
def _sigmoid(x):
    return torch.sigmoid(x)
def _layernorm(x, axis=-1, eps=1e-5):
    m = x.mean(dim=axis, keepdim=True)
    v = x.var(dim=axis, keepdim=True, unbiased=False)
    return (x - m) / torch.sqrt(v + eps)
def _scatter_add(tgt, idx, src, axis=0):
    return tgt.clone().index_add_(axis, idx, src)
def _segment_sum(src, seg, n):
    out = torch.zeros((n,) + src.shape[1:], dtype=src.dtype)
    return out.index_add_(0, seg, src)
def _pad(x, pw):
    flat = tuple(v for pair in reversed(pw) for v in pair)
    return torch.nn.functional.pad(x, flat)

kernel_name = 'standalone__edge_featured_mpnn_egc__graph'

def setup_inputs():

    _w = (lambda a: (lambda t: t.to(torch.bfloat16) if t.is_floating_point() else t)(torch.as_tensor(a)))
    N, deg, D, De = 25000, 32, 64, max(0, 1)
    E = N * deg
    return {
        "x": _w((lambda *s: torch.randn(*s, dtype=torch.bfloat16) * 0.2)(N, D)),
        "e_attr": _w((lambda *s: torch.randn(*s, dtype=torch.bfloat16) * 0.2)(E, De)),
        "src": _w((lambda lo, hi, *s: torch.randint(lo, hi, s))(0, N, E).to(torch.int64)),
        "dst": _w((lambda lo, hi, *s: torch.randint(lo, hi, s))(0, N, E).to(torch.int64)),
        "u_w": _w((lambda *s: torch.randn(*s, dtype=torch.bfloat16) * 0.05)(D, D)),
        "v_w": _w((lambda *s: torch.randn(*s, dtype=torch.bfloat16) * 0.05)(D, D)),
        "g_w": _w((lambda *s: torch.randn(*s, dtype=torch.bfloat16) * 0.2)(2 * D + De, D)),
    }

def reference(x, e_attr, src, dst, u_w, v_w, g_w):
    N, D = x.shape
    g_in = torch.concatenate([x[dst], x[src], e_attr], axis=-1)
    eta = _sigmoid(g_in @ g_w)
    hv = x @ v_w
    msg = eta * hv[src]
    agg = _segment_sum(msg, dst, N)
    return _silu(x @ u_w + agg)
```

```python
import sys, struct
NAME = "standalone__edge_featured_mpnn_egc__graph"

N = 25000; E = 800000
NB = 128; NPB = 196
W = 256; CHQ = 782
CH = CHQ*4
NQ = E//4
REC_STRIDE = CH*8
WS_RECS = 0
RECS_BYTES = W*REC_STRIDE
WS_OFFS = 0x620000
OFFS_BYTES = NB*W*4
WS_TAB = 0x640000
TROWS = 25088
HSTRIDE = TROWS*128
WS_FLAGS = WS_TAB + 2*HSTRIDE
NTW = 196
assert WS_OFFS >= RECS_BYTES and WS_TAB >= WS_OFFS+OFFS_BYTES
NLOG2E = -1.4426950408889634
def f32bits(x): return struct.unpack("<I", struct.pack("<f", x))[0]
QLIM = 14.0

out = []
def e(s=""):
    for line in s.strip("\n").split("\n"):
        out.append(line)
def lab(s): out.append(s + ":")

def srd(r, lo, hi, size, stride=0):
    e(f"  s_mov_b32 s{r}, s{lo}")
    if stride:
        e(f"  s_and_b32 s{r+1}, s{hi}, 0xffff")
        e(f"  s_or_b32 s{r+1}, s{r+1}, {stride<<16:#x}")
    else:
        e(f"  s_and_b32 s{r+1}, s{hi}, 0xffff")
    e(f"  s_mov_b32 s{r+2}, {size}")
    e(f"  s_mov_b32 s{r+3}, 0x20000")

def scan64(v):
    for sh in (1,2,4,8):
        e(f"  s_nop 1\n  v_add_u32_dpp v{v}, v{v}, v{v} row_shr:{sh} row_mask:0xf bank_mask:0xf")
    e(f"  s_nop 1\n  v_add_u32_dpp v{v}, v{v}, v{v} row_bcast:15 row_mask:0xa bank_mask:0xf")
    e(f"  s_nop 1\n  v_add_u32_dpp v{v}, v{v}, v{v} row_bcast:31 row_mask:0xc bank_mask:0xf")
    e("  s_nop 1")

K1_HIST = 0; K1_START = 512; K1_STAGE = 1024
K1_LDS = 1024 + 25088
K1_WB = 0; K1_WV = 8192; K1_FLAG = 16384
CAP = 80; SSTR = (CAP+1)*4
NSL = 200
L_P = 0
L_AGG = L_P + NSL*128
L_WA = L_AGG + NSL*128
L_WU = L_WA + 4096
L_CNT = L_WU + 4096
L_HIST = L_CNT + 1024
L_START = L_HIST + 512
L_SORT = L_START + 512
L_FLAG = L_SORT + 1024
L_SLOT = 65536
K2_LDS = L_SLOT + 65536
assert L_FLAG + 64 <= L_SLOT
DUMMY = N
assert NSL*SSTR + 64 <= 65536

ST = ""
import os
ST = os.environ.get("K1_ST", "")
FORCE_SLOW = int(os.environ.get("FORCE_SLOW", "0"))

def k1():
    e(f"""
.text
.globl k1_kernel
.p2align 8
.type k1_kernel,@function
k1_kernel:
  s_cmp_ge_u32 s2, {W+NTW}
  s_cbranch_scc1 K1_END
  s_load_dwordx2 s[4:5], s[0:1], 72        ; ws
  s_cmp_ge_u32 s2, {W}
  s_cbranch_scc1 K1_TABLE
  s_load_dwordx2 s[6:7], s[0:1], 8         ; e_attr
  s_load_dwordx4 s[8:11], s[0:1], 16
  v_cmp_gt_u32 vcc, 128, v0
  s_and_saveexec_b64 s[32:33], vcc
  s_cbranch_execz K1P_Z
  v_lshlrev_b32 v1, 2, v0
  v_mov_b32 v2, 0
  ds_write_b32 v1, v2 offset:{K1_HIST}
K1P_Z:
  s_mov_b64 exec, s[32:33]
  s_mul_i32 s3, s2, {CHQ}
  v_add_u32 v1, s3, v0                     ; q0 = w*CHQ + t
  v_add_u32 v2, 512, v1                    ; q1
  s_mov_b32 s34, {NQ}
  v_cmp_gt_u32 s[36:37], s34, v1
  v_cmp_gt_u32 s[38:39], s34, v2
  v_cmp_gt_u32 vcc, {CHQ-512}, v0
  s_and_b64 s[38:39], s[38:39], vcc
  s_waitcnt lgkmcnt(0)
""")
    srd(12, 10, 11, E*4)
    srd(16, 8, 9, E*4)
    srd(20, 6, 7, E*2)
    srd(24, 4, 5, RECS_BYTES)
    e(f"""
  s_add_u32 s40, s4, {WS_OFFS}
  s_addc_u32 s41, s5, 0
""")
    srd(28, 40, 41, OFFS_BYTES)
    e(f"""
  v_lshlrev_b32 v3, 4, v1
  v_lshlrev_b32 v24, 3, v1
  v_lshlrev_b32 v25, 4, v2
  v_lshlrev_b32 v26, 3, v2
  s_mov_b64 exec, s[36:37]
  s_cbranch_execz K1P_L0
  buffer_load_dwordx4 v[4:7], v3, s[12:15], 0 offen
  buffer_load_dwordx4 v[8:11], v3, s[16:19], 0 offen
  buffer_load_dwordx2 v[12:13], v24, s[20:23], 0 offen
K1P_L0:
  s_mov_b64 exec, s[38:39]
  s_cbranch_execz K1P_L1
  buffer_load_dwordx4 v[14:17], v25, s[12:15], 0 offen
  buffer_load_dwordx4 v[18:21], v25, s[16:19], 0 offen
  buffer_load_dwordx2 v[22:23], v26, s[20:23], 0 offen
K1P_L1:
  s_mov_b64 exec, -1
  s_waitcnt lgkmcnt(0)
  s_barrier
  s_mov_b32 s42, 5350
  s_movk_i32 s43, -{NPB}
  s_mov_b32 s44, 0xffff0000
  v_mov_b32 v27, 1
  s_waitcnt vmcnt(0)
""")
    for r,(d,s_,ee,bk,rk,m) in enumerate([(4,8,12,28,36,"s[36:37]"),(14,18,22,32,40,"s[38:39]")]):
        e(f"  s_mov_b64 exec, {m}")
        e(f"  s_cbranch_execz K1P_A{r}")
        for j in range(4):
            e(f"  v_mul_u32_u24 v{bk+j}, s42, v{d+j}")
        for j in range(4):
            e(f"  v_lshrrev_b32 v{bk+j}, 20, v{bk+j}")
        for j in range(4):
            e(f"  v_mad_i32_i24 v{d+j}, v{bk+j}, s43, v{d+j}")
        for j in range(4):
            e(f"  v_lshlrev_b32 v{bk+j}, 2, v{bk+j}")
        for j in range(4):
            e(f"  ds_add_rtn_u32 v{rk+j}, v{bk+j}, v27 offset:{K1_HIST}")
        e(f"  v_lshl_or_b32 v{s_}, v{ee}, 16, v{s_}")
        e(f"  v_and_or_b32 v{s_+1}, v{ee}, s44, v{s_+1}")
        e(f"  v_lshl_or_b32 v{s_+2}, v{ee+1}, 16, v{s_+2}")
        e(f"  v_and_or_b32 v{s_+3}, v{ee+1}, s44, v{s_+3}")
        lab(f"K1P_A{r}")
    e(f"""
  s_mov_b64 exec, -1
  s_waitcnt lgkmcnt(0)
  s_barrier
  v_and_b32 v1, 63, v0
  v_lshlrev_b32 v2, 3, v1
  ds_read_b64 v[44:45], v2 offset:{K1_HIST}
  s_waitcnt lgkmcnt(0)
  v_add_u32 v46, v44, v45
""")
    scan64(46)
    e(f"""
  v_sub_u32 v47, v46, v45
  v_sub_u32 v46, v47, v44                  ; start(2l)
  ds_write_b64 v2, v[46:47] offset:{K1_START}
  v_readfirstlane_b32 s3, v0
  s_nop 3
  s_lshr_b32 s3, s3, 6
  s_cmp_lg_u32 s3, 7
  s_cbranch_scc1 K1P_NOOFF
  v_lshl_or_b32 v48, v44, 16, v46
  v_lshl_or_b32 v49, v45, 16, v47
  v_lshlrev_b32 v50, 11, v1                ; (2l)*1024
  s_lshl_b32 s3, s2, 2
  v_add_u32 v50, s3, v50
  buffer_store_dword v48, v50, s[28:31], 0 offen {ST}
  buffer_store_dword v49, v50, s[28:31], 0 offen offset:1024 {ST}
K1P_NOOFF:
""")
    for r,(d,s_,ee,bk,rk,m) in enumerate([(4,8,12,28,36,"s[36:37]"),(14,18,22,32,40,"s[38:39]")]):
        e(f"  s_mov_b64 exec, {m}")
        e(f"  s_cbranch_execz K1P_B{r}")
        for j in range(4):
            e(f"  ds_read_b32 v{bk+j}, v{bk+j} offset:{K1_START}")
        e("  s_waitcnt lgkmcnt(0)")
        for j in range(4):
            e(f"  v_add_lshl_u32 v{bk+j}, v{bk+j}, v{rk+j}, 3")
        for j in range(4):
            e(f"  v_mov_b32 v{52+2*j}, v{s_+j}")
            e(f"  v_mov_b32 v{53+2*j}, v{d+j}")
        for j in range(4):
            e(f"  ds_write_b64 v{bk+j}, v[{52+2*j}:{53+2*j}] offset:{K1_STAGE}")
        lab(f"K1P_B{r}")
    e(f"""
  s_mov_b64 exec, -1
  s_waitcnt lgkmcnt(0)
  s_barrier
  v_lshlrev_b32 v1, 4, v0
  ds_read_b128 v[4:7], v1 offset:{K1_STAGE}
  ds_read_b128 v[8:11], v1 offset:{K1_STAGE+8192}
  ds_read_b128 v[12:15], v1 offset:{K1_STAGE+16384}
  s_mul_i32 s3, s2, {REC_STRIDE}
  v_add_u32 v2, s3, v1
  v_cmp_gt_u32 vcc, {1564-1536}, v0
  s_and_saveexec_b64 s[32:33], vcc
  s_cbranch_execz K1P_C0
  ds_read_b128 v[16:19], v1 offset:{K1_STAGE+24576}
  s_waitcnt lgkmcnt(0)
  v_add_u32 v3, 24576, v2
  buffer_store_dwordx4 v[16:19], v3, s[24:27], 0 offen {ST}
K1P_C0:
  s_mov_b64 exec, s[32:33]
  s_waitcnt lgkmcnt(0)
  v_add_u32 v3, 8192, v2
  v_add_u32 v20, 16384, v2
  buffer_store_dwordx4 v[4:7], v2, s[24:27], 0 offen {ST}
  buffer_store_dwordx4 v[8:11], v3, s[24:27], 0 offen {ST}
  buffer_store_dwordx4 v[12:15], v20, s[24:27], 0 offen {ST}
  s_endpgm
""")
    e(f"""
K1_TABLE:
  s_load_dwordx2 s[6:7], s[0:1], 0         ; x
  s_load_dwordx4 s[8:11], s[0:1], 40       ; v_w, g_w
  s_sub_u32 s35, s2, {W}
  v_readfirstlane_b32 s3, v0
  v_mov_b32 v2, 0
  v_mov_b32 v1, {K1_FLAG}
  ds_write_b32 v1, v2
  s_lshr_b32 s36, s3, 6                    ; wave
  s_and_b32 s37, s36, 1                    ; h
  s_lshr_b32 s36, s36, 1
  s_waitcnt lgkmcnt(0)
""")
    srd(12, 6, 7, N*128)
    srd(16, 8, 9, 8192)
    srd(20, 10, 11, 129*128)
    e(f"""
  s_add_u32 s40, s4, {WS_TAB}
  s_addc_u32 s41, s5, 0
""")
    srd(24, 40, 41, 2*HSTRIDE)
    e(f"""
  s_add_u32 s40, s4, {WS_FLAGS}
  s_addc_u32 s41, s5, 0
""")
    srd(28, 40, 41, NTW*4)
    e(f"""
  v_lshlrev_b32 v1, 4, v0
  v_add_u32 v2, 8192, v1
  buffer_load_dwordx4 v[4:7], v2, s[20:23], 0 offen
  buffer_load_dwordx4 v[8:11], v1, s[16:19], 0 offen
  v_and_b32 v3, 63, v0                     ; lane
  v_and_b32 v12, 31, v3
  s_lshl_b32 s3, s35, 2
  s_add_u32 s3, s3, s36
  s_lshl_b32 s38, s3, 5
  v_add_u32 v13, s38, v12
  v_lshlrev_b32 v13, 7, v13
  v_lshrrev_b32 v14, 5, v3
  v_lshl_add_u32 v13, v14, 4, v13
""")
    for ks in range(4):
        e(f"  buffer_load_dwordx4 v[{16+4*ks}:{19+4*ks}], v13, s[12:15], 0 offen offset:{32*ks}")
    e(f"""
  s_waitcnt vmcnt(4)
  ds_write_b128 v1, v[4:7] offset:{K1_WB}
  ds_write_b128 v1, v[8:11] offset:{K1_WV}
  v_lshlrev_b32 v15, 3, v14                ; 8*(l>>5)
  v_bfe_u32 v4, v3, 2, 2
  v_add_u32 v15, v15, v4
  v_lshlrev_b32 v15, 7, v15
  v_bfe_u32 v4, v3, 4, 1
  v_lshl_add_u32 v15, v4, 5, v15
  v_and_b32 v4, 3, v3
  v_lshl_add_u32 v15, v4, 3, v15
  s_lshl_b32 s3, s37, 6
  v_add_u32 v15, s3, v15
  s_waitcnt lgkmcnt(0)
  s_barrier
""")
    for m,(base,lds) in enumerate([(32,K1_WB),(48,K1_WV)]):
        for ks in range(4):
            e(f"  ds_read_b64_tr_b16 v[{base+4*ks}:{base+4*ks+1}], v15 offset:{lds+ks*2048}")
            e(f"  ds_read_b64_tr_b16 v[{base+4*ks+2}:{base+4*ks+3}], v15 offset:{lds+ks*2048+512}")
    e("  s_waitcnt vmcnt(0) lgkmcnt(0)")
    DQ, DV = 64, 80
    for ks in range(4):
        c = "0" if ks == 0 else f"v[{DQ}:{DQ+15}]"
        e(f"  v_mfma_f32_32x32x16_bf16 v[{DQ}:{DQ+15}], v[{16+4*ks}:{19+4*ks}], v[{32+4*ks}:{35+4*ks}], {c}")
    for ks in range(4):
        c = "0" if ks == 0 else f"v[{DV}:{DV+15}]"
        e(f"  v_mfma_f32_32x32x16_bf16 v[{DV}:{DV+15}], v[{16+4*ks}:{19+4*ks}], v[{48+4*ks}:{51+4*ks}], {c}")
    e(f"""
  s_mul_i32 s3, s37, {HSTRIDE}
  s_lshl_b32 s39, s38, 7
  s_add_u32 s3, s3, s39
  v_lshlrev_b32 v4, 9, v14
  v_lshl_add_u32 v4, v12, 2, v4
  v_add_u32 v4, s3, v4
  s_mov_b32 s40, {f32bits(NLOG2E):#x}
  s_mov_b32 s41, 0x7fffffff
  s_mov_b32 s42, 0x7fff0000
  s_mov_b32 s43, 0x80000000
  v_mov_b32 v5, 0
  s_nop 7
  s_nop 7
""")
    for r in range(16):
        e(f"  v_mul_f32 v{DQ+r}, s40, v{DQ+r}")
    for r in range(0,16,2):
        e(f"  v_max3_f32 v5, |v{DQ+r}|, |v{DQ+r+1}|, v5")
    for r in range(16):
        e(f"  v_exp_f32 v{DQ+r}, v{DQ+r}")
    e("  s_nop 0")
    for r in range(16):
        e(f"  v_cvt_f16_f32 v{DQ+r}, v{DQ+r}")
    for r in range(16):
        e(f"  v_and_b32 v{16+r}, s41, v{DV+r}")
    for r in range(16):
        e(f"  v_add_u32 v{16+r}, 0x8000, v{16+r}")
    for r in range(16):
        e(f"  v_sub_u32_e64 v{16+r}, v{16+r}, v{DQ+r} clamp")
    for r in range(16):
        e(f"  v_and_or_b32 v{16+r}, v{16+r}, s42, v{DQ+r}")
    for r in range(16):
        e(f"  v_and_or_b32 v{16+r}, v{DV+r}, s43, v{16+r}")
    for r in range(16):
        off = (8*(r>>2) + (r&3))*128
        e(f"  buffer_store_dword v{16+r}, v4, s[24:27], 0 offen offset:{off} {ST}")
    e(f"""
  v_mov_b32 v6, {f32bits(QLIM):#x}
  v_cmp_nle_f32 vcc, v5, v6
  s_cbranch_vccz K1T_OK
  v_mov_b32 v2, 1
  v_mov_b32 v1, {K1_FLAG}
  ds_write_b32 v1, v2
K1T_OK:
  s_waitcnt lgkmcnt(0)
  s_barrier
  v_cmp_eq_u32 vcc, 0, v0
  s_and_saveexec_b64 s[32:33], vcc
  s_cbranch_execz K1_END
  v_mov_b32 v1, {K1_FLAG}
  ds_read_b32 v2, v1
  s_lshl_b32 s3, s35, 2
  v_mov_b32 v3, s3
  s_waitcnt lgkmcnt(0)
  buffer_store_dword v2, v3, s[28:31], 0 offen {ST}
K1_END:
  s_endpgm
""")

def k2():
    e(f"""
.text
.globl k2_kernel
.p2align 8
.type k2_kernel,@function
k2_kernel:
  s_cmp_ge_u32 s2, 256
  s_cbranch_scc1 K2_END
  s_load_dwordx2 s[4:5], s[0:1], 72        ; ws
  s_load_dwordx2 s[6:7], s[0:1], 0         ; x
  s_load_dwordx2 s[8:9], s[0:1], 32        ; u_w
  s_load_dwordx4 s[44:47], s[0:1], 48      ; g_w, out
  s_lshr_b32 s33, s2, 1                    ; bucket
  s_and_b32 s34, s2, 1                     ; half
  v_readfirstlane_b32 s35, v0
  v_and_b32 v1, 63, v0                     ; lane
  s_nop 2
  s_lshr_b32 s35, s35, 6                   ; wave
  s_waitcnt lgkmcnt(0)
""")
    srd(12, 6, 7, N*128)
    srd(16, 4, 5, RECS_BYTES)
    e(f"""
  s_add_u32 s40, s4, {WS_OFFS}
  s_addc_u32 s41, s5, 0
""")
    srd(20, 40, 41, OFFS_BYTES)
    e(f"""
  s_mul_i32 s3, s34, {HSTRIDE}
  s_add_u32 s3, s3, {WS_TAB}
  s_add_u32 s40, s4, s3
  s_addc_u32 s41, s5, 0
""")
    srd(24, 40, 41, TROWS, stride=128)
    srd(28, 44, 45, 129*128)
    srd(92, 8, 9, 8192)
    srd(48, 46, 47, N*128)
    e(f"""
  s_add_u32 s40, s4, {WS_FLAGS}
  s_addc_u32 s41, s5, 0
""")
    srd(52, 40, 41, NTW*4)
    e(f"""
  v_and_b32 v2, 7, v1
  v_lshlrev_b32 v2, 1, v2
  v_lshrrev_b32 v3, 5, v1
  v_add_u32 v2, v2, v3
  s_lshl_b32 s3, s35, 4
  v_add_u32 v2, s3, v2
  s_lshl_b32 s3, s33, 10
  v_lshl_add_u32 v3, v2, 2, s3
  buffer_load_dword v4, v3, s[20:23], 0 offen
  v_and_b32 v5, 255, v0
  v_lshrrev_b32 v6, 2, v5
  v_lshlrev_b32 v6, 7, v6
  v_and_b32 v7, 3, v0
  v_lshl_add_u32 v6, v7, 4, v6
  s_lshl_b32 s3, s34, 6
  v_add_u32 v6, s3, v6
  s_cmp_ge_u32 s35, 8
  s_cbranch_scc1 K2_NOW
  s_cmp_ge_u32 s35, 4
  s_cbranch_scc1 K2_WU
  buffer_load_dwordx4 v[8:11], v6, s[28:31], 0 offen
  s_branch K2_NOW
K2_WU:
  buffer_load_dwordx4 v[8:11], v6, s[92:95], 0 offen
K2_NOW:
  v_and_b32 v7, 7, v1                      ; q
  v_lshlrev_b32 v12, 3, v7
  s_lshl_b32 s3, s34, 6
  s_add_u32 s3, s3, {128*128}
  v_add_u32 v12, s3, v12
  buffer_load_dwordx2 v[14:15], v12, s[28:31], 0 offen
  v_lshlrev_b32 v12, 2, v1
  buffer_load_dword v16, v12, s[52:55], 0 offen
  buffer_load_dword v17, v12, s[52:55], 0 offen offset:256
  buffer_load_dword v18, v12, s[52:55], 0 offen offset:512
  buffer_load_dword v19, v12, s[52:55], 0 offen offset:768
  s_lshr_b32 s36, s35, 1
  s_mul_i32 s3, s33, {NPB}
  s_lshl_b32 s37, s36, 5
  s_add_u32 s3, s3, s37
  v_and_b32 v12, 31, v1
  v_add_u32 v13, s3, v12
  v_lshlrev_b32 v13, 7, v13
  v_lshrrev_b32 v20, 5, v1
  v_lshl_add_u32 v13, v20, 4, v13
  s_cmp_ge_u32 s35, 14
  s_cbranch_scc1 K2_NOX
""")
    for ks in range(4):
        e(f"  buffer_load_dwordx4 v[{64+4*ks}:{67+4*ks}], v13, s[12:15], 0 offen offset:{32*ks}")
    e(f"""
K2_NOX:
  v_mov_b32 v24, {DUMMY}
  v_mov_b32 v25, {DUMMY}
  v_mov_b32 v26, {DUMMY}
  v_mov_b32 v27, {DUMMY}
  v_lshlrev_b32 v21, 4, v0
  v_add_u32 v21, {L_SLOT}, v21
  ds_write_b128 v21, v[24:27] offset:0
  ds_write_b128 v21, v[24:27] offset:16384
  ds_write_b128 v21, v[24:27] offset:32768
  ds_write_b128 v21, v[24:27] offset:49152
  v_mov_b32 v22, 0
  v_lshlrev_b32 v23, 2, v0
  v_cmp_gt_u32 vcc, 384, v0
  s_and_saveexec_b64 s[56:57], vcc
  s_cbranch_execz K2_Z
  ds_write_b32 v23, v22 offset:{L_CNT}
K2_Z:
  s_mov_b64 exec, s[56:57]
  s_waitcnt vmcnt(0)
  v_and_b32 v22, 31, v1                    ; j
""")
    for m in range(8):
        e(f"""
  v_mov_b32_dpp v80, v4 row_newbcast:{m} row_mask:0xf bank_mask:0xf
  v_mov_b32_dpp v81, v2 row_newbcast:{m} row_mask:0xf bank_mask:0xf
  s_mov_b32 s3, {REC_STRIDE}
  v_lshrrev_b32 v82, 16, v80               ; cnt
  v_and_b32 v80, 0xffff, v80               ; start
  v_mul_lo_u32 v81, v81, s3
  v_add_u32 v80, v80, v22
  v_lshl_add_u32 v{60 if False else 84+m}, v80, 3, v81
  v_cmp_gt_u32 s[{58+2*m}:{59+2*m}], v82, v22
  v_add_u32 v83, 32, v22
  v_cmp_gt_u32 s[{74+2*m}:{75+2*m}], v82, v83
  v_mov_b32 v{92+m}, v82
  s_mov_b64 exec, s[{58+2*m}:{59+2*m}]
  s_cbranch_execz K2_R0_{m}
  buffer_load_dwordx2 v[{28+2*m}:{29+2*m}], v{84+m}, s[16:19], 0 offen
K2_R0_{m}:
  s_mov_b64 exec, s[{74+2*m}:{75+2*m}]
  s_cbranch_execz K2_R1_{m}
  buffer_load_dwordx2 v[{44+2*m}:{45+2*m}], v{84+m}, s[16:19], 0 offen offset:256
K2_R1_{m}:
  s_mov_b64 exec, -1
""")
    e(f"""
  s_cmp_ge_u32 s35, 8
  s_cbranch_scc1 K2_NOW2
  v_and_b32 v5, 511, v0
  v_lshlrev_b32 v5, 4, v5
  ds_write_b128 v5, v[8:11] offset:{L_WA}
K2_NOW2:
  s_cmp_lg_u32 s35, 15
  s_cbranch_scc1 K2_NOF
  v_or3_b32 v16, v16, v17, v18
  v_or_b32 v16, v16, v19
  v_cmp_ne_u32 vcc, 0, v16
  s_nop 1
  s_cmp_lg_u64 vcc, 0
  s_cselect_b32 s3, 1, {FORCE_SLOW}
  v_mov_b32 v16, s3
  v_mov_b32 v17, {L_FLAG}
  ds_write_b32 v17, v16
K2_NOF:
  ; c' = -log2e * c  -> v[4:7]
  s_mov_b32 s3, {f32bits(NLOG2E):#x}
  v_lshlrev_b32 v4, 16, v14
  v_and_b32 v5, 0xffff0000, v14
  v_lshlrev_b32 v6, 16, v15
  v_and_b32 v7, 0xffff0000, v15
  v_mul_f32 v4, s3, v4
  v_mul_f32 v5, s3, v5
  v_mul_f32 v6, s3, v6
  v_mul_f32 v7, s3, v7
  s_waitcnt lgkmcnt(0)
  s_barrier
  s_cmp_ge_u32 s35, 14
  s_cbranch_scc1 K2_NOMM
  s_and_b32 s37, s35, 1
  v_lshrrev_b32 v20, 5, v1
  v_lshlrev_b32 v8, 3, v20
  v_bfe_u32 v9, v1, 2, 2
  v_add_u32 v8, v8, v9
  v_lshlrev_b32 v8, 6, v8
  v_bfe_u32 v9, v1, 4, 1
  v_lshl_add_u32 v8, v9, 5, v8
  v_and_b32 v9, 3, v1
  v_lshl_add_u32 v8, v9, 3, v8
  s_lshl_b32 s3, s37, 12
  v_add_u32 v8, s3, v8
""")
    for ks in range(4):
        e(f"  ds_read_b64_tr_b16 v[{100+4*ks}:{101+4*ks}], v8 offset:{L_WA+ks*1024}")
        e(f"  ds_read_b64_tr_b16 v[{102+4*ks}:{103+4*ks}], v8 offset:{L_WA+ks*1024+256}")
    e("  s_waitcnt lgkmcnt(0)")
    D = 8
    for ks in range(4):
        c = "0" if ks == 0 else f"v[{D}:{D+15}]"
        e(f"  v_mfma_f32_32x32x16_bf16 v[{D}:{D+15}], v[{64+4*ks}:{67+4*ks}], v[{100+4*ks}:{103+4*ks}], {c}")
    e(f"""
  v_lshrrev_b32 v24, 5, v1
  v_lshlrev_b32 v24, 9, v24
  v_and_b32 v25, 31, v1
  v_lshl_add_u32 v24, v25, 2, v24
  s_lshl_b32 s3, s36, 12
  s_cmp_eq_u32 s37, 0
  s_cselect_b32 s38, {L_P}, {L_AGG}
  s_cselect_b32 s39, {f32bits(NLOG2E):#x}, 1.0
  s_add_u32 s3, s3, s38
  v_add_u32 v24, s3, v24
""")
    e("  s_nop 7\n  s_nop 3")
    for r in range(16):
        e(f"  v_mul_f32 v{D+r}, s39, v{D+r}")
    for r in range(4):
        e(f"  ds_write_b32 v24, v{D+r} offset:{(8*(r>>2)+(r&3))*128}")
    e("  s_cmp_eq_u32 s36, 6\n  s_cbranch_scc1 K2_NOMM")
    for r in range(4,16):
        e(f"  ds_write_b32 v24, v{D+r} offset:{(8*(r>>2)+(r&3))*128}")
    lab("K2_NOMM")
    e(f"""
  v_mov_b32 v24, 1
  s_mov_b32 s38, {SSTR}
  s_mov_b32 s39, {CAP}
  v_mov_b32 v25, 0
  v_mov_b32 v27, {L_SLOT}
  s_waitcnt vmcnt(0)
""")
    def rank_issue(mask, rp, rk, lbl):
        e(f"""  s_mov_b64 exec, {mask}
  s_cbranch_execz {lbl}
  v_lshlrev_b32 v{rk}, 2, v{rp+1}
  ds_add_rtn_u32 v{rk}, v{rk}, v24 offset:{L_CNT}
{lbl}:""")
    def rank_use(mask, rp, rk, lbl):
        e(f"""  s_mov_b64 exec, {mask}
  s_cbranch_execz {lbl}
  v_cmp_gt_u32 vcc, s39, v{rk}
  v_mad_u32_u24 v{rp+1}, s38, v{rp+1}, v27
  v_lshl_add_u32 v{rp+1}, v{rk}, 2, v{rp+1}
  v_cndmask_b32 v26, 1, v25, vcc
  v_or_b32 v25, v25, v26
  s_and_b64 exec, exec, vcc
  s_cbranch_execz {lbl}
  ds_write_b32 v{rp+1}, v{rp}
{lbl}:""")
    for m in range(8):
        rank_issue(f"s[{58+2*m}:{59+2*m}]", 28+2*m, 100+m, f"K2_A0_{m}")
    for m in range(8):
        rank_issue(f"s[{74+2*m}:{75+2*m}]", 44+2*m, 108+m, f"K2_A1_{m}")
    e("  s_mov_b64 exec, -1\n  s_waitcnt lgkmcnt(0)")
    for m in range(8):
        rank_use(f"s[{58+2*m}:{59+2*m}]", 28+2*m, 100+m, f"K2_B0_{m}")
    for m in range(8):
        rank_use(f"s[{74+2*m}:{75+2*m}]", 44+2*m, 108+m, f"K2_B1_{m}")
    e("  s_mov_b64 exec, -1")
    e(f"""
  v_and_b32 v22, 31, v1
  v_add_u32 v22, 64, v22
  s_movk_i32 s36, 512
K2_XR:
""")
    e("  s_mov_b64 s[40:41], 0")
    for m in range(8):
        e(f"""  v_cmp_gt_u32 vcc, v{92+m}, v22
  s_nop 1
  s_or_b64 s[40:41], s[40:41], vcc""")
    e(f"""  s_cmp_eq_u64 s[40:41], 0
  s_cbranch_scc1 K2_XR_DONE
""")
    for m in range(8):
        e(f"""  v_cmp_gt_u32 vcc, v{92+m}, v22
  s_nop 1
  s_mov_b64 exec, vcc
  s_cbranch_execz K2_XR_{m}
  buffer_load_dwordx2 v[28:29], v{84+m}, s[16:19], s36 offen
  s_waitcnt vmcnt(0)
  v_lshlrev_b32 v100, 2, v29
  ds_add_rtn_u32 v100, v100, v24 offset:{L_CNT}
  s_waitcnt lgkmcnt(0)
  v_cmp_gt_u32 vcc, s39, v100
  v_mad_u32_u24 v29, s38, v29, v27
  v_lshl_add_u32 v29, v100, 2, v29
  v_cndmask_b32 v26, 1, v25, vcc
  v_or_b32 v25, v25, v26
  s_and_b64 exec, exec, vcc
  s_cbranch_execz K2_XR_{m}
  ds_write_b32 v29, v28
K2_XR_{m}:
  s_mov_b64 exec, -1""")
    e(f"""
  v_add_u32 v22, 32, v22
  s_add_u32 s36, s36, 256
  s_branch K2_XR
K2_XR_DONE:
  v_cmp_ne_u32 vcc, 0, v25
  s_nop 1
  s_cmp_eq_u64 vcc, 0
  s_cbranch_scc1 K2_NOOV
  v_mov_b32 v16, 1
  v_mov_b32 v17, {L_FLAG}
  ds_write_b32 v17, v16
K2_NOOV:
  s_waitcnt lgkmcnt(0)
  s_barrier
  v_mov_b32 v17, {L_FLAG}
  ds_read_b32 v16, v17
  s_waitcnt lgkmcnt(0)
  v_readfirstlane_b32 s3, v16
  s_nop 3
  s_cmp_lg_u32 s3, 0
  s_cbranch_scc1 K2_SLOW
  v_cmp_gt_u32 vcc, {NSL}, v0
  s_and_saveexec_b64 s[56:57], vcc
  s_cbranch_execz K2_S0
  v_lshlrev_b32 v8, 2, v0
  ds_read_b32 v9, v8 offset:{L_CNT}
  v_mov_b32 v11, 1
  s_waitcnt lgkmcnt(0)
  v_lshlrev_b32 v10, 2, v9
  ds_add_rtn_u32 v12, v10, v11 offset:{L_HIST}
  s_waitcnt lgkmcnt(0)
K2_S0:
  s_mov_b64 exec, s[56:57]
  s_barrier                                 ; B2
  s_cmp_ge_u32 s35, 4
  s_cbranch_scc1 K2_S1
  v_lshlrev_b32 v13, 3, v1
  v_sub_u32 v13, {126*4}, v13
  ds_read_b64 v[14:15], v13 offset:{L_HIST}
  s_waitcnt lgkmcnt(0)
  v_add_u32 v16, v14, v15
""")
    scan64(16)
    e(f"""
  v_sub_u32 v18, v16, v14
  v_sub_u32 v19, v18, v15                  ; start(127-2l)
  v_mov_b32 v20, v18
  v_mov_b32 v21, v19
  ds_write_b64 v13, v[20:21] offset:{L_START}
  v_cmp_gt_u32 vcc, {NSL}, v0
  s_and_saveexec_b64 s[56:57], vcc
  s_cbranch_execz K2_S2
  s_waitcnt lgkmcnt(0)
  ds_read_b32 v14, v10 offset:{L_START}
  s_waitcnt lgkmcnt(0)
  v_add_lshl_u32 v14, v14, v12, 2
  v_lshl_or_b32 v15, v9, 16, v0
  ds_write_b32 v14, v15 offset:{L_SORT}
K2_S2:
  s_mov_b64 exec, s[56:57]
K2_S1:
  s_waitcnt lgkmcnt(0)
  s_barrier                                 ; B3
  v_lshlrev_b32 v8, 5, v1
  v_min_u32 v8, {24*32}, v8
  ds_read_b32 v9, v8 offset:{L_SORT}
  v_cmp_gt_u32 vcc, 25, v1
  s_waitcnt lgkmcnt(0)
  v_lshrrev_b32 v9, 16, v9
  v_cndmask_b32 v9, 0, v9, vcc
  v_mov_b32 v60, v9
""")
    scan64(60)
    e(f"""
  v_readlane_b32 s58, v60, 63              ; total T
  v_sub_u32 v60, v60, v9
  s_nop 2
  s_mul_i32 s59, s58, s35
  s_lshr_b32 s59, s59, 4                   ; cur
  s_add_u32 s3, s35, 1
  s_mul_i32 s60, s58, s3
  s_lshr_b32 s60, s60, 4                   ; end
  v_and_b32 v61, 7, v1
  v_lshlrev_b32 v61, 4, v61                ; q*16
  v_lshrrev_b32 v62, 3, v1                 ; group
  v_mov_b32 v17, v61
  v_mov_b32 v19, v61
  v_mov_b32 v21, v61
  v_mov_b32 v23, v61
K2_SEG:
  s_cmp_ge_u32 s59, s60
  s_cbranch_scc1 K2_DONE
  v_cmp_ge_u32 vcc, s59, v60
  s_nop 1
  s_bcnt1_i32_b64 s61, vcc
  s_sub_u32 s61, s61, 1                    ; set
  s_add_u32 s62, s61, 1
  s_nop 1
  v_readlane_b32 s63, v60, s61             ; S_set
  v_readlane_b32 s64, v60, s62             ; S_set+1
  s_lshl_b32 s3, s61, 5
  v_lshl_add_u32 v8, v62, 2, s3
  ds_read_b32 v9, v8 offset:{L_SORT}
  s_min_u32 s64, s64, s60
  s_sub_u32 s65, s64, s59                  ; n
  s_sub_u32 s66, s59, s63                  ; i0
  s_mov_b32 s59, s64
  s_lshl_b32 s66, s66, 2
  s_mov_b32 s3, {SSTR}
  s_waitcnt lgkmcnt(0)
  v_and_b32 v9, 0xffff, v9
  v_mul_u32_u24 v52, s3, v9
  s_add_u32 s66, s66, {L_SLOT}
  v_add_u32 v52, s66, v52
  v_lshl_add_u32 v53, v9, 7, v61
  ds_read_b128 v[8:11], v53 offset:{L_P}
""")
    IDX = [16,18,20,22]; EE = [24,25,26,27]; T = [28,32,36,40]
    for k in range(4):
        e(f"  ds_read_u16 v{IDX[k]}, v52 offset:{4*k}")
    for k in range(4):
        e(f"  ds_read_u16_d16_hi v{EE[k]}, v52 offset:{4*k+2}")
    e("  v_mov_b32 v12, 0\n  v_mov_b32 v13, 0\n  v_mov_b32 v14, 0\n  v_mov_b32 v15, 0")
    e("  s_waitcnt lgkmcnt(4)")
    for k in range(4):
        e(f"  buffer_load_dwordx4 v[{T[k]}:{T[k]+3}], v[{IDX[k]}:{IDX[k]+1}], s[24:27], 0 idxen offen")
    e("  s_waitcnt lgkmcnt(0)")
    def compute(k, pre=None, mid=None):
        ep = EE[k] & ~1
        sel = "op_sel_hi:[0,1,1]" if (EE[k] & 1) == 0 else "op_sel:[1,0,0] op_sel_hi:[1,1,1]"
        t = T[k]
        e(f"  v_pk_fma_f32 v[44:45], v[{ep}:{ep+1}], v[4:5], v[8:9] {sel}")
        e(f"  v_pk_fma_f32 v[46:47], v[{ep}:{ep+1}], v[6:7], v[10:11] {sel}")
        if pre: e(pre)
        for j in range(4): e(f"  v_exp_f32 v{44+j}, v{44+j}")
        if mid: e(mid)
        for j in range(4): e(f"  v_fma_mix_f32 v{48+j}, v{t+j}, v{44+j}, 1.0 op_sel_hi:[1,0,0]")
        for j in range(4): e(f"  v_rcp_f32 v{48+j}, v{48+j}")
        e(f"  v_pk_fma_f32 v[12:13], v[48:49], v[{t}:{t+1}], v[12:13]")
        e(f"  v_pk_fma_f32 v[14:15], v[50:51], v[{t+2}:{t+3}], v[14:15]")
    e("  s_cmp_le_u32 s65, 4\n  s_cbranch_scc1 K2_T0")
    lab("K2_RING")
    for k in range(4):
        e("  s_waitcnt vmcnt(3)")
        compute(k, pre=f"  ds_read_u16 v{IDX[k]}, v52 offset:{16+4*k}",
                   mid=f"  ds_read_u16_d16_hi v{EE[k]}, v52 offset:{16+4*k+2}")
        e("  s_waitcnt lgkmcnt(1)")
        e(f"  buffer_load_dwordx4 v[{T[k]}:{T[k]+3}], v[{IDX[k]}:{IDX[k]+1}], s[24:27], 0 idxen offen")
        if k == 3: e("  v_add_u32 v52, 16, v52")
        e("  s_sub_u32 s65, s65, 1\n  s_cmp_le_u32 s65, 4")
        if k < 3: e(f"  s_cbranch_scc1 K2_T{k+1}")
        else: e("  s_cbranch_scc0 K2_RING")
    for ent in range(4):
        lab(f"K2_T{ent}")
        e("  s_waitcnt lgkmcnt(0)")
        for j in range(4):
            k = (ent+j) % 4
            e(f"  s_waitcnt vmcnt({3-j})")
            compute(k)
            if j < 3:
                e(f"  s_sub_u32 s65, s65, 1\n  s_cmp_eq_u32 s65, 0\n  s_cbranch_scc1 K2_FLUSH")
        if ent < 3: e("  s_branch K2_FLUSH")
    e(f"""
K2_FLUSH:
  ds_add_f32 v53, v12 offset:{L_AGG}
  ds_add_f32 v53, v13 offset:{L_AGG+4}
  ds_add_f32 v53, v14 offset:{L_AGG+8}
  ds_add_f32 v53, v15 offset:{L_AGG+12}
  s_branch K2_SEG
K2_DONE:
  s_waitcnt lgkmcnt(0)
  s_barrier                                 ; B4
  v_cmp_gt_u32 vcc, {NPB*4}, v0
  s_and_saveexec_b64 s[56:57], vcc
  s_cbranch_execz K2_END
  v_lshlrev_b32 v1, 5, v0
  ds_read_b128 v[4:7], v1 offset:{L_AGG}
  ds_read_b128 v[8:11], v1 offset:{L_AGG+16}
  v_lshrrev_b32 v2, 2, v0
  s_mul_i32 s3, s33, {NPB}
  v_add_u32 v2, s3, v2
  v_lshlrev_b32 v2, 7, v2
  v_and_b32 v3, 3, v0
  v_lshl_add_u32 v2, v3, 4, v2
  s_lshl_b32 s3, s34, 6
  v_add_u32 v2, s3, v2
  s_mov_b32 s3, {f32bits(NLOG2E):#x}
  s_waitcnt lgkmcnt(0)
""")
    for j in range(8): e(f"  v_mul_f32 v{12+j}, s3, v{4+j}")
    for j in range(8): e(f"  v_exp_f32 v{12+j}, v{12+j}")
    e("  s_nop 0")
    for j in range(8): e(f"  v_add_f32 v{12+j}, 1.0, v{12+j}")
    for j in range(8): e(f"  v_rcp_f32 v{12+j}, v{12+j}")
    e("  s_nop 0")
    for j in range(8): e(f"  v_mul_f32 v{4+j}, v{4+j}, v{12+j}")
    for j in range(4): e(f"  v_cvt_pk_bf16_f32 v{20+j}, v{4+2*j}, v{5+2*j}")
    e(f"""
  buffer_store_dwordx4 v[20:23], v2, s[48:51], 0 offen
K2_END:
  s_endpgm
""")
    WBS = L_WA
    e(f"""
K2_SLOW:
  s_barrier
  v_cmp_gt_u32 vcc, 256, v0
  s_and_saveexec_b64 s[56:57], vcc
  s_cbranch_execz K2_SL0
  v_lshrrev_b32 v8, 2, v0
  v_lshlrev_b32 v8, 7, v8
  v_and_b32 v9, 3, v0
  v_lshl_add_u32 v8, v9, 4, v8
  s_lshl_b32 s3, s34, 6
  s_add_u32 s3, s3, 8192
  v_add_u32 v8, s3, v8
  buffer_load_dwordx4 v[12:15], v8, s[28:31], 0 offen
  v_lshlrev_b32 v9, 4, v0
  s_waitcnt vmcnt(0)
  ds_write_b128 v9, v[12:15] offset:{WBS}
K2_SL0:
  s_mov_b64 exec, s[56:57]
  s_waitcnt lgkmcnt(0)
  s_barrier
  v_and_b32 v61, 7, v1
  v_lshlrev_b32 v63, 3, v61
  v_lshlrev_b32 v61, 4, v61                ; q*16
  v_lshrrev_b32 v62, 3, v1                 ; group
  v_mov_b32 v17, v61
  s_mov_b32 s58, s35                       ; cell
K2_SLC:
  s_cmp_ge_u32 s58, {W}
  s_cbranch_scc1 K2_DONE
  s_lshl_b32 s3, s33, 10
  s_lshl_b32 s59, s58, 2
  s_add_u32 s3, s3, s59
  v_mov_b32 v8, s3
  buffer_load_dword v9, v8, s[20:23], 0 offen
  s_waitcnt vmcnt(0)
  v_readfirstlane_b32 s60, v9
  s_nop 3
  s_lshr_b32 s61, s60, 16                  ; cnt
  s_and_b32 s60, s60, 0xffff               ; start
  s_mul_i32 s62, s58, {REC_STRIDE}
  s_mov_b32 s63, 0                         ; j0
K2_SLJ:
  s_cmp_ge_u32 s63, s61
  s_cbranch_scc1 K2_SLN
  v_add_u32 v8, s63, v62                   ; j
  v_cmp_gt_u32 vcc, s61, v8
  s_and_saveexec_b64 s[56:57], vcc
  s_cbranch_execz K2_SLX
  v_add_u32 v8, s60, v8
  v_lshl_add_u32 v8, v8, 3, s62
  buffer_load_dwordx2 v[10:11], v8, s[16:19], 0 offen
  s_waitcnt vmcnt(0)
  v_and_b32 v16, 0xffff, v10               ; src
  v_and_b32 v24, 0xffff0000, v10           ; e
  v_lshl_add_u32 v53, v11, 7, v61
  ds_read_b128 v[12:15], v53 offset:{L_P}
  buffer_load_dwordx4 v[28:31], v[16:17], s[24:27], 0 idxen offen
  v_lshlrev_b32 v18, 7, v16
  v_mov_b32 v19, v63
  v_mov_b32 v44, 0
  v_mov_b32 v45, 0
  v_mov_b32 v46, 0
  v_mov_b32 v47, 0
  s_mov_b32 s64, 0
K2_SLK:
  buffer_load_dwordx4 v[32:35], v18, s[12:15], s64 offen
""")
    for kk in range(8):
        e(f"  ds_read_b64 v[{64+2*kk}:{65+2*kk}], v19 offset:{WBS+kk*64}")
    e("  s_waitcnt vmcnt(0) lgkmcnt(0)")
    for kk in range(8):
        xr = 32 + kk//2
        if kk % 2 == 0: e(f"  v_lshlrev_b32 v36, 16, v{xr}")
        else: e(f"  v_and_b32 v36, 0xffff0000, v{xr}")
        w0, w1 = 64+2*kk, 65+2*kk
        e(f"""  v_lshlrev_b32 v37, 16, v{w0}
  v_and_b32 v38, 0xffff0000, v{w0}
  v_lshlrev_b32 v39, 16, v{w1}
  v_and_b32 v40, 0xffff0000, v{w1}
  v_fmac_f32 v44, v36, v37
  v_fmac_f32 v45, v36, v38
  v_fmac_f32 v46, v36, v39
  v_fmac_f32 v47, v36, v40""")
    e(f"""
  v_add_u32 v19, 512, v19
  s_add_u32 s64, s64, 16
  s_cmp_lt_u32 s64, 128
  s_cbranch_scc1 K2_SLK
  s_mov_b32 s3, {f32bits(NLOG2E):#x}
""")
    for j in range(4):
        e(f"  v_fma_f32 v{12+j}, v24, v{4+j}, v{12+j}")
    for j in range(4):
        e(f"  v_fma_f32 v{12+j}, v{44+j}, s3, v{12+j}")
    for j in range(4): e(f"  v_exp_f32 v{12+j}, v{12+j}")
    e("  s_nop 0")
    for j in range(4): e(f"  v_add_f32 v{12+j}, 1.0, v{12+j}")
    for j in range(4): e(f"  v_rcp_f32 v{12+j}, v{12+j}")
    e("  s_nop 0")
    for j in range(4): e(f"  v_mul_f32 v{12+j}, v{12+j}, v{28+j}")
    for j in range(4): e(f"  ds_add_f32 v53, v{12+j} offset:{L_AGG+4*j}")
    e(f"""
K2_SLX:
  s_mov_b64 exec, s[56:57]
  s_add_u32 s63, s63, 8
  s_branch K2_SLJ
K2_SLN:
  s_add_u32 s58, s58, 16
  s_branch K2_SLC
""")

def descr(name, vgpr, sgpr):
    e(f"""
.section .rodata,"a"
.p2align 6
.amdhsa_kernel {name}
  .amdhsa_next_free_vgpr {vgpr}
  .amdhsa_next_free_sgpr {sgpr}
  .amdhsa_accum_offset {((vgpr+3)//4)*4}
  .amdhsa_group_segment_fixed_size 0
  .amdhsa_kernarg_size 80
  .amdhsa_user_sgpr_count 2
  .amdhsa_user_sgpr_kernarg_segment_ptr 1
  .amdhsa_system_sgpr_workgroup_id_x 1
.end_amdhsa_kernel
""")

def main():
    e(f"""; Edge-gated MPNN forward in two launches (generated by gen/gen.py; hand-designed).
; @launch kernel=k1_kernel grid=({W+NTW},1,1) block=(512,1,1) lds={K1_LDS}
; @launch kernel=k2_kernel grid=(256,1,1) block=(1024,1,1) lds={K2_LDS}
.amdgcn_target "amdgcn-amd-amdhsa--gfx950"
""")
    k1()
    k2()
    descr("k1_kernel", 96, 96)
    descr("k2_kernel", 128, 100)
    path = sys.argv[1] if len(sys.argv) > 1 else f"cdna_kernels/{NAME}.s"
    open(path, "w").write("\n".join(out) + "\n")
main()
```

```python
import sys, struct
NAME = "standalone__edge_featured_mpnn_egc__graph"

N = 25000; E = 800000
NB = 128; NPB = 196
W = 256; CHQ = 782
CH = CHQ*4
NQ = E//4
REC_STRIDE = CH*8
WS_RECS = 0
RECS_BYTES = W*REC_STRIDE
WS_OFFS = 0x620000
OFFS_BYTES = NB*W*4
WS_TAB = 0x640000
TROWS = 25088
HSTRIDE = TROWS*128
WS_FLAGS = WS_TAB + 2*HSTRIDE
NTW = 196
assert WS_OFFS >= RECS_BYTES and WS_TAB >= WS_OFFS+OFFS_BYTES
NLOG2E = -1.4426950408889634
def f32bits(x): return struct.unpack("<I", struct.pack("<f", x))[0]
QLIM = 14.0

out = []
def e(s=""):
    for line in s.strip("\n").split("\n"):
        out.append(line)
def lab(s): out.append(s + ":")

def srd(r, lo, hi, size, stride=0):
    e(f"  s_mov_b32 s{r}, s{lo}")
    if stride:
        e(f"  s_and_b32 s{r+1}, s{hi}, 0xffff")
        e(f"  s_or_b32 s{r+1}, s{r+1}, {stride<<16:#x}")
    else:
        e(f"  s_and_b32 s{r+1}, s{hi}, 0xffff")
    e(f"  s_mov_b32 s{r+2}, {size}")
    e(f"  s_mov_b32 s{r+3}, 0x20000")

def scan64(v):
    for sh in (1,2,4,8):
        e(f"  s_nop 1\n  v_add_u32_dpp v{v}, v{v}, v{v} row_shr:{sh} row_mask:0xf bank_mask:0xf")
    e(f"  s_nop 1\n  v_add_u32_dpp v{v}, v{v}, v{v} row_bcast:15 row_mask:0xa bank_mask:0xf")
    e(f"  s_nop 1\n  v_add_u32_dpp v{v}, v{v}, v{v} row_bcast:31 row_mask:0xc bank_mask:0xf")
    e("  s_nop 1")

K1_HIST = 0; K1_START = 512; K1_STAGE = 1024
K1_LDS = 1024 + 25088
K1_WB = 0; K1_WV = 8192; K1_FLAG = 16384
CAP = 80; SSTR = (CAP+1)*4
NSL = 200
L_P = 0
L_AGG = L_P + NSL*128
L_WA = L_AGG + NSL*128
L_WU = L_WA + 4096
L_CNT = L_WU + 4096
L_HIST = L_CNT + 1024
L_START = L_HIST + 512
L_SORT = L_START + 512
L_FLAG = L_SORT + 1024
L_SLOT = 65536
K2_LDS = L_SLOT + 65536
assert L_FLAG + 64 <= L_SLOT
DUMMY = N
assert NSL*SSTR + 64 <= 65536

ST = ""
import os
ST = os.environ.get("K1_ST", "")
FORCE_SLOW = int(os.environ.get("FORCE_SLOW", "0"))
STAMP = int(os.environ.get("STAMP", "0"))
EXP = os.environ.get("EXP", "")
WS_STAMP = 32 << 20
def stamp_init(wsreg, kidx):
    if not STAMP: return
    e(f"""  s_lshl_b32 s100, s2, 10
  s_add_u32 s100, s100, {WS_STAMP + kidx*(1<<20)}
  s_add_u32 s96, s{wsreg}, s100
  s_addc_u32 s97, s{wsreg+1}, 0
  s_and_b32 s97, s97, 0xffff
  s_mov_b32 s98, 1024
  s_mov_b32 s99, 0x20000
  v_lshrrev_b32 v126, 6, v0
  v_lshlrev_b32 v126, 2, v126""")
def stampv(i, sreg, nw=16):
    if not STAMP: return
    e(f"""  v_mov_b32 v127, s{sreg}
  buffer_store_dword v127, v126, s[96:99], 0 offen offset:{i*4*nw}""")
def stampc(i, nw=16):
    if not STAMP: return
    e(f"""  s_memtime s[100:101]
  s_waitcnt lgkmcnt(0)
  v_mov_b32 v127, s100
  buffer_store_dword v127, v126, s[96:99], 0 offen offset:{i*4*nw}""")
def stamp(i, nw=16):
    if not STAMP: return
    e(f"""  s_memrealtime s[100:101]
  s_waitcnt lgkmcnt(0)
  v_mov_b32 v127, s100
  buffer_store_dword v127, v126, s[96:99], 0 offen offset:{i*4*nw}""")


def k1():
    e(f"""
.text
.globl k1_kernel
.p2align 8
.type k1_kernel,@function
k1_kernel:
  s_cmp_ge_u32 s2, {W+NTW}
  s_cbranch_scc1 K1_END
  s_load_dwordx2 s[4:5], s[0:1], 72        ; ws
  s_cmp_ge_u32 s2, {W}
  s_cbranch_scc1 K1_TABLE
  s_load_dwordx2 s[6:7], s[0:1], 8         ; e_attr
  s_load_dwordx4 s[8:11], s[0:1], 16
  v_cmp_gt_u32 vcc, 128, v0
  s_and_saveexec_b64 s[32:33], vcc
  s_cbranch_execz K1P_Z
  v_lshlrev_b32 v1, 2, v0
  v_mov_b32 v2, 0
  ds_write_b32 v1, v2 offset:{K1_HIST}
K1P_Z:
  s_mov_b64 exec, s[32:33]
  s_mul_i32 s3, s2, {CHQ}
  v_add_u32 v1, s3, v0                     ; q0 = w*CHQ + t
  v_add_u32 v2, 512, v1                    ; q1
  s_mov_b32 s34, {NQ}
  v_cmp_gt_u32 s[36:37], s34, v1
  v_cmp_gt_u32 s[38:39], s34, v2
  v_cmp_gt_u32 vcc, {CHQ-512}, v0
  s_and_b64 s[38:39], s[38:39], vcc
  s_waitcnt lgkmcnt(0)
""")
    stamp_init(4, 0); stamp(0)
    srd(12, 10, 11, E*4)
    srd(16, 8, 9, E*4)
    srd(20, 6, 7, E*2)
    srd(24, 4, 5, RECS_BYTES)
    e(f"""
  s_add_u32 s40, s4, {WS_OFFS}
  s_addc_u32 s41, s5, 0
""")
    srd(28, 40, 41, OFFS_BYTES)
    e(f"""
  v_lshlrev_b32 v3, 4, v1
  v_lshlrev_b32 v24, 3, v1
  v_lshlrev_b32 v25, 4, v2
  v_lshlrev_b32 v26, 3, v2
  s_mov_b64 exec, s[36:37]
  s_cbranch_execz K1P_L0
  buffer_load_dwordx4 v[4:7], v3, s[12:15], 0 offen
  buffer_load_dwordx4 v[8:11], v3, s[16:19], 0 offen
  buffer_load_dwordx2 v[12:13], v24, s[20:23], 0 offen
K1P_L0:
  s_mov_b64 exec, s[38:39]
  s_cbranch_execz K1P_L1
  buffer_load_dwordx4 v[14:17], v25, s[12:15], 0 offen
  buffer_load_dwordx4 v[18:21], v25, s[16:19], 0 offen
  buffer_load_dwordx2 v[22:23], v26, s[20:23], 0 offen
K1P_L1:
  s_mov_b64 exec, -1
  s_waitcnt lgkmcnt(0)
  s_barrier
  s_mov_b32 s42, 5350
  s_movk_i32 s43, -{NPB}
  s_mov_b32 s44, 0xffff0000
  v_mov_b32 v27, 1
  s_waitcnt vmcnt(0)
""")
    stamp(1)
    for r,(d,s_,ee,bk,rk,m) in enumerate([(4,8,12,28,36,"s[36:37]"),(14,18,22,32,40,"s[38:39]")]):
        e(f"  s_mov_b64 exec, {m}")
        e(f"  s_cbranch_execz K1P_A{r}")
        for j in range(4):
            e(f"  v_mul_u32_u24 v{bk+j}, s42, v{d+j}")
        for j in range(4):
            e(f"  v_lshrrev_b32 v{bk+j}, 20, v{bk+j}")
        for j in range(4):
            e(f"  v_mad_i32_i24 v{d+j}, v{bk+j}, s43, v{d+j}")
        for j in range(4):
            e(f"  v_lshlrev_b32 v{bk+j}, 2, v{bk+j}")
        for j in range(4):
            e(f"  ds_add_rtn_u32 v{rk+j}, v{bk+j}, v27 offset:{K1_HIST}")
        e(f"  v_lshl_or_b32 v{s_}, v{ee}, 16, v{s_}")
        e(f"  v_and_or_b32 v{s_+1}, v{ee}, s44, v{s_+1}")
        e(f"  v_lshl_or_b32 v{s_+2}, v{ee+1}, 16, v{s_+2}")
        e(f"  v_and_or_b32 v{s_+3}, v{ee+1}, s44, v{s_+3}")
        lab(f"K1P_A{r}")
    e(f"""
  s_mov_b64 exec, -1
  s_waitcnt lgkmcnt(0)
  s_barrier
""")
    stamp(2)
    e(f"""
  v_and_b32 v1, 63, v0
  v_lshlrev_b32 v2, 3, v1
  ds_read_b64 v[44:45], v2 offset:{K1_HIST}
  s_waitcnt lgkmcnt(0)
  v_add_u32 v46, v44, v45
""")
    scan64(46)
    e(f"""
  v_sub_u32 v47, v46, v45
  v_sub_u32 v46, v47, v44                  ; start(2l)
  ds_write_b64 v2, v[46:47] offset:{K1_START}
  v_readfirstlane_b32 s3, v0
  s_nop 3
  s_lshr_b32 s3, s3, 6
  s_cmp_lg_u32 s3, 7
  s_cbranch_scc1 K1P_NOOFF
  v_lshl_or_b32 v48, v44, 16, v46
  v_lshl_or_b32 v49, v45, 16, v47
  v_lshlrev_b32 v50, 11, v1                ; (2l)*1024
  s_lshl_b32 s3, s2, 2
  v_add_u32 v50, s3, v50
  buffer_store_dword v48, v50, s[28:31], 0 offen {ST}
  buffer_store_dword v49, v50, s[28:31], 0 offen offset:1024 {ST}
K1P_NOOFF:
""")
    for r,(d,s_,ee,bk,rk,m) in enumerate([(4,8,12,28,36,"s[36:37]"),(14,18,22,32,40,"s[38:39]")]):
        e(f"  s_mov_b64 exec, {m}")
        e(f"  s_cbranch_execz K1P_B{r}")
        for j in range(4):
            e(f"  ds_read_b32 v{bk+j}, v{bk+j} offset:{K1_START}")
        e("  s_waitcnt lgkmcnt(0)")
        for j in range(4):
            e(f"  v_add_lshl_u32 v{bk+j}, v{bk+j}, v{rk+j}, 3")
        for j in range(4):
            e(f"  v_mov_b32 v{52+2*j}, v{s_+j}")
            e(f"  v_mov_b32 v{53+2*j}, v{d+j}")
        for j in range(4):
            e(f"  ds_write_b64 v{bk+j}, v[{52+2*j}:{53+2*j}] offset:{K1_STAGE}")
        lab(f"K1P_B{r}")
    e(f"""
  s_mov_b64 exec, -1
  s_waitcnt lgkmcnt(0)
  s_barrier
""")
    stamp(3)
    e(f"""
  v_lshlrev_b32 v1, 4, v0
  ds_read_b128 v[4:7], v1 offset:{K1_STAGE}
  ds_read_b128 v[8:11], v1 offset:{K1_STAGE+8192}
  ds_read_b128 v[12:15], v1 offset:{K1_STAGE+16384}
  s_mul_i32 s3, s2, {REC_STRIDE}
  v_add_u32 v2, s3, v1
  v_cmp_gt_u32 vcc, {1564-1536}, v0
  s_and_saveexec_b64 s[32:33], vcc
  s_cbranch_execz K1P_C0
  ds_read_b128 v[16:19], v1 offset:{K1_STAGE+24576}
  s_waitcnt lgkmcnt(0)
  v_add_u32 v3, 24576, v2
  buffer_store_dwordx4 v[16:19], v3, s[24:27], 0 offen {ST}
K1P_C0:
  s_mov_b64 exec, s[32:33]
  s_waitcnt lgkmcnt(0)
  v_add_u32 v3, 8192, v2
  v_add_u32 v20, 16384, v2
  buffer_store_dwordx4 v[4:7], v2, s[24:27], 0 offen {ST}
  buffer_store_dwordx4 v[8:11], v3, s[24:27], 0 offen {ST}
  buffer_store_dwordx4 v[12:15], v20, s[24:27], 0 offen {ST}
""")
    if STAMP:
        stamp(4); e("  s_waitcnt vmcnt(0)"); stamp(5)
    e("  s_endpgm")
    e(f"""
K1_TABLE:
  s_load_dwordx2 s[6:7], s[0:1], 0         ; x
  s_load_dwordx4 s[8:11], s[0:1], 40       ; v_w, g_w
  s_sub_u32 s35, s2, {W}
  v_readfirstlane_b32 s3, v0
  v_mov_b32 v2, 0
  v_mov_b32 v1, {K1_FLAG}
  ds_write_b32 v1, v2
  s_lshr_b32 s36, s3, 6                    ; wave
  s_and_b32 s37, s36, 1                    ; h
  s_lshr_b32 s36, s36, 1
  s_waitcnt lgkmcnt(0)
""")
    stamp_init(4, 0); stamp(0)
    srd(12, 6, 7, N*128)
    srd(16, 8, 9, 8192)
    srd(20, 10, 11, 129*128)
    e(f"""
  s_add_u32 s40, s4, {WS_TAB}
  s_addc_u32 s41, s5, 0
""")
    srd(24, 40, 41, 2*HSTRIDE)
    e(f"""
  s_add_u32 s40, s4, {WS_FLAGS}
  s_addc_u32 s41, s5, 0
""")
    srd(28, 40, 41, NTW*4)
    e(f"""
  v_lshlrev_b32 v1, 4, v0
  v_add_u32 v2, 8192, v1
  buffer_load_dwordx4 v[4:7], v2, s[20:23], 0 offen
  buffer_load_dwordx4 v[8:11], v1, s[16:19], 0 offen
  v_and_b32 v3, 63, v0                     ; lane
  v_and_b32 v12, 31, v3
  s_lshl_b32 s3, s35, 2
  s_add_u32 s3, s3, s36
  s_lshl_b32 s38, s3, 5
  v_add_u32 v13, s38, v12
  v_lshlrev_b32 v13, 7, v13
  v_lshrrev_b32 v14, 5, v3
  v_lshl_add_u32 v13, v14, 4, v13
""")
    for ks in range(4):
        e(f"  buffer_load_dwordx4 v[{16+4*ks}:{19+4*ks}], v13, s[12:15], 0 offen offset:{32*ks}")
    e(f"""
  s_waitcnt vmcnt(4)
  ds_write_b128 v1, v[4:7] offset:{K1_WB}
  ds_write_b128 v1, v[8:11] offset:{K1_WV}
  v_lshlrev_b32 v15, 3, v14                ; 8*(l>>5)
  v_bfe_u32 v4, v3, 2, 2
  v_add_u32 v15, v15, v4
  v_lshlrev_b32 v15, 7, v15
  v_bfe_u32 v4, v3, 4, 1
  v_lshl_add_u32 v15, v4, 5, v15
  v_and_b32 v4, 3, v3
  v_lshl_add_u32 v15, v4, 3, v15
  s_lshl_b32 s3, s37, 6
  v_add_u32 v15, s3, v15
  s_waitcnt lgkmcnt(0)
  s_barrier
""")
    stamp(1)
    for m,(base,lds) in enumerate([(32,K1_WB),(48,K1_WV)]):
        for ks in range(4):
            e(f"  ds_read_b64_tr_b16 v[{base+4*ks}:{base+4*ks+1}], v15 offset:{lds+ks*2048}")
            e(f"  ds_read_b64_tr_b16 v[{base+4*ks+2}:{base+4*ks+3}], v15 offset:{lds+ks*2048+512}")
    e("  s_waitcnt vmcnt(0) lgkmcnt(0)")
    DQ, DV = 64, 80
    for ks in range(4):
        c = "0" if ks == 0 else f"v[{DQ}:{DQ+15}]"
        e(f"  v_mfma_f32_32x32x16_bf16 v[{DQ}:{DQ+15}], v[{16+4*ks}:{19+4*ks}], v[{32+4*ks}:{35+4*ks}], {c}")
    for ks in range(4):
        c = "0" if ks == 0 else f"v[{DV}:{DV+15}]"
        e(f"  v_mfma_f32_32x32x16_bf16 v[{DV}:{DV+15}], v[{16+4*ks}:{19+4*ks}], v[{48+4*ks}:{51+4*ks}], {c}")
    e(f"""
  s_mul_i32 s3, s37, {HSTRIDE}
  s_lshl_b32 s39, s38, 7
  s_add_u32 s3, s3, s39
  v_lshlrev_b32 v4, 9, v14
  v_lshl_add_u32 v4, v12, 2, v4
  v_add_u32 v4, s3, v4
  s_mov_b32 s40, {f32bits(NLOG2E):#x}
  s_mov_b32 s41, 0x7fffffff
  s_mov_b32 s42, 0x7fff0000
  s_mov_b32 s43, 0x80000000
  v_mov_b32 v5, 0
  s_nop 7
  s_nop 7
""")
    for r in range(16):
        e(f"  v_mul_f32 v{DQ+r}, s40, v{DQ+r}")
    for r in range(0,16,2):
        e(f"  v_max3_f32 v5, |v{DQ+r}|, |v{DQ+r+1}|, v5")
    for r in range(16):
        e(f"  v_exp_f32 v{DQ+r}, v{DQ+r}")
    e("  s_nop 0")
    for r in range(16):
        e(f"  v_cvt_f16_f32 v{DQ+r}, v{DQ+r}")
    for r in range(16):
        e(f"  v_and_b32 v{16+r}, s41, v{DV+r}")
    for r in range(16):
        e(f"  v_add_u32 v{16+r}, 0x8000, v{16+r}")
    for r in range(16):
        e(f"  v_sub_u32_e64 v{16+r}, v{16+r}, v{DQ+r} clamp")
    for r in range(16):
        e(f"  v_and_or_b32 v{16+r}, v{16+r}, s42, v{DQ+r}")
    for r in range(16):
        e(f"  v_and_or_b32 v{16+r}, v{DV+r}, s43, v{16+r}")
    for r in range(16):
        off = (8*(r>>2) + (r&3))*128
        e(f"  buffer_store_dword v{16+r}, v4, s[24:27], 0 offen offset:{off} {ST}")
    if STAMP:
        stamp(4); e("  s_waitcnt vmcnt(0)"); stamp(5)
    e(f"""
  v_mov_b32 v6, {f32bits(QLIM):#x}
  v_cmp_nle_f32 vcc, v5, v6
  s_cbranch_vccz K1T_OK
  v_mov_b32 v2, 1
  v_mov_b32 v1, {K1_FLAG}
  ds_write_b32 v1, v2
K1T_OK:
  s_waitcnt lgkmcnt(0)
  s_barrier
  v_cmp_eq_u32 vcc, 0, v0
  s_and_saveexec_b64 s[32:33], vcc
  s_cbranch_execz K1_END
  v_mov_b32 v1, {K1_FLAG}
  ds_read_b32 v2, v1
  s_lshl_b32 s3, s35, 2
  v_mov_b32 v3, s3
  s_waitcnt lgkmcnt(0)
  buffer_store_dword v2, v3, s[28:31], 0 offen {ST}
K1_END:
  s_endpgm
""")

def k2():
    e(f"""
.text
.globl k2_kernel
.p2align 8
.type k2_kernel,@function
k2_kernel:
  s_cmp_ge_u32 s2, 256
  s_cbranch_scc1 K2_END
  s_load_dwordx2 s[4:5], s[0:1], 72        ; ws
  s_load_dwordx2 s[6:7], s[0:1], 0         ; x
  s_load_dwordx2 s[8:9], s[0:1], 32        ; u_w
  s_load_dwordx4 s[44:47], s[0:1], 48      ; g_w, out
  s_lshr_b32 s33, s2, 1                    ; bucket
  s_and_b32 s34, s2, 1                     ; half
  v_readfirstlane_b32 s35, v0
  v_and_b32 v1, 63, v0                     ; lane
  s_nop 2
  s_lshr_b32 s35, s35, 6                   ; wave
  s_waitcnt lgkmcnt(0)
""")
    stamp_init(4, 1); stamp(0)
    srd(12, 6, 7, N*128)
    srd(16, 4, 5, RECS_BYTES)
    e(f"""
  s_add_u32 s40, s4, {WS_OFFS}
  s_addc_u32 s41, s5, 0
""")
    srd(20, 40, 41, OFFS_BYTES)
    e(f"""
  s_mul_i32 s3, s34, {HSTRIDE}
  s_add_u32 s3, s3, {WS_TAB}
  s_add_u32 s40, s4, s3
  s_addc_u32 s41, s5, 0
""")
    srd(24, 40, 41, TROWS, stride=128)
    srd(28, 44, 45, 129*128)
    srd(92, 8, 9, 8192)
    srd(48, 46, 47, N*128)
    e(f"""
  s_add_u32 s40, s4, {WS_FLAGS}
  s_addc_u32 s41, s5, 0
""")
    srd(52, 40, 41, NTW*4)
    e(f"""
  v_and_b32 v2, 7, v1
  v_lshlrev_b32 v2, 1, v2
  v_lshrrev_b32 v3, 5, v1
  v_add_u32 v2, v2, v3
  s_lshl_b32 s3, s35, 4
  v_add_u32 v2, s3, v2
  s_lshl_b32 s3, s33, 10
  v_lshl_add_u32 v3, v2, 2, s3
  buffer_load_dword v4, v3, s[20:23], 0 offen
  v_and_b32 v5, 255, v0
  v_lshrrev_b32 v6, 2, v5
  v_lshlrev_b32 v6, 7, v6
  v_and_b32 v7, 3, v0
  v_lshl_add_u32 v6, v7, 4, v6
  s_lshl_b32 s3, s34, 6
  v_add_u32 v6, s3, v6
  s_cmp_ge_u32 s35, 8
  s_cbranch_scc1 K2_NOW
  s_cmp_ge_u32 s35, 4
  s_cbranch_scc1 K2_WU
  buffer_load_dwordx4 v[8:11], v6, s[28:31], 0 offen
  s_branch K2_NOW
K2_WU:
  buffer_load_dwordx4 v[8:11], v6, s[92:95], 0 offen
K2_NOW:
  v_and_b32 v7, 7, v1                      ; q
  v_lshlrev_b32 v12, 3, v7
  s_lshl_b32 s3, s34, 6
  s_add_u32 s3, s3, {128*128}
  v_add_u32 v12, s3, v12
  buffer_load_dwordx2 v[14:15], v12, s[28:31], 0 offen
  v_lshlrev_b32 v12, 2, v1
  buffer_load_dword v16, v12, s[52:55], 0 offen
  buffer_load_dword v17, v12, s[52:55], 0 offen offset:256
  buffer_load_dword v18, v12, s[52:55], 0 offen offset:512
  buffer_load_dword v19, v12, s[52:55], 0 offen offset:768
  s_lshr_b32 s36, s35, 1
  s_mul_i32 s3, s33, {NPB}
  s_lshl_b32 s37, s36, 5
  s_add_u32 s3, s3, s37
  v_and_b32 v12, 31, v1
  v_add_u32 v13, s3, v12
  v_lshlrev_b32 v13, 7, v13
  v_lshrrev_b32 v20, 5, v1
  v_lshl_add_u32 v13, v20, 4, v13
  s_cmp_ge_u32 s35, 14
  s_cbranch_scc1 K2_NOX
""")
    for ks in range(4):
        e(f"  buffer_load_dwordx4 v[{64+4*ks}:{67+4*ks}], v13, s[12:15], 0 offen offset:{32*ks}")
    e(f"""
K2_NOX:
  v_mov_b32 v24, {DUMMY}
  v_mov_b32 v25, {DUMMY}
  v_mov_b32 v26, {DUMMY}
  v_mov_b32 v27, {DUMMY}
  v_lshlrev_b32 v21, 4, v0
  v_add_u32 v21, {L_SLOT}, v21
  ds_write_b128 v21, v[24:27] offset:0
  ds_write_b128 v21, v[24:27] offset:16384
  ds_write_b128 v21, v[24:27] offset:32768
  ds_write_b128 v21, v[24:27] offset:49152
  v_mov_b32 v22, 0
  v_lshlrev_b32 v23, 2, v0
  v_cmp_gt_u32 vcc, 384, v0
  s_and_saveexec_b64 s[56:57], vcc
  s_cbranch_execz K2_Z
  ds_write_b32 v23, v22 offset:{L_CNT}
K2_Z:
  s_mov_b64 exec, s[56:57]
  s_waitcnt vmcnt(0)
""")
    stamp(1)
    e(f"""
  v_and_b32 v22, 31, v1                    ; j
""")
    for m in range(8):
        e(f"""
  v_mov_b32_dpp v80, v4 row_newbcast:{m} row_mask:0xf bank_mask:0xf
  v_mov_b32_dpp v81, v2 row_newbcast:{m} row_mask:0xf bank_mask:0xf
  s_mov_b32 s3, {REC_STRIDE}
  v_lshrrev_b32 v82, 16, v80               ; cnt
  v_and_b32 v80, 0xffff, v80               ; start
  v_mul_lo_u32 v81, v81, s3
  v_add_u32 v80, v80, v22
  v_lshl_add_u32 v{60 if False else 84+m}, v80, 3, v81
  v_cmp_gt_u32 s[{58+2*m}:{59+2*m}], v82, v22
  v_add_u32 v83, 32, v22
  v_cmp_gt_u32 s[{74+2*m}:{75+2*m}], v82, v83
  v_mov_b32 v{92+m}, v82
  s_mov_b64 exec, s[{58+2*m}:{59+2*m}]
  s_cbranch_execz K2_R0_{m}
  buffer_load_dwordx2 v[{28+2*m}:{29+2*m}], v{84+m}, s[16:19], 0 offen
K2_R0_{m}:
  s_mov_b64 exec, s[{74+2*m}:{75+2*m}]
  s_cbranch_execz K2_R1_{m}
  buffer_load_dwordx2 v[{44+2*m}:{45+2*m}], v{84+m}, s[16:19], 0 offen offset:256
K2_R1_{m}:
  s_mov_b64 exec, -1
""")
    e(f"""
  s_cmp_ge_u32 s35, 8
  s_cbranch_scc1 K2_NOW2
  v_and_b32 v5, 511, v0
  v_lshlrev_b32 v5, 4, v5
  ds_write_b128 v5, v[8:11] offset:{L_WA}
K2_NOW2:
  s_cmp_lg_u32 s35, 15
  s_cbranch_scc1 K2_NOF
  v_or3_b32 v16, v16, v17, v18
  v_or_b32 v16, v16, v19
  v_cmp_ne_u32 vcc, 0, v16
  s_nop 1
  s_cmp_lg_u64 vcc, 0
  s_cselect_b32 s3, 1, {FORCE_SLOW}
  v_mov_b32 v16, s3
  v_mov_b32 v17, {L_FLAG}
  v_mov_b32 v18, 0
  ds_write_b32 v17, v16
  ds_write_b32 v17, v18 offset:4
K2_NOF:
  ; c' = -log2e * c  -> v[4:7]
  s_mov_b32 s3, {f32bits(NLOG2E):#x}
  v_lshlrev_b32 v4, 16, v14
  v_and_b32 v5, 0xffff0000, v14
  v_lshlrev_b32 v6, 16, v15
  v_and_b32 v7, 0xffff0000, v15
  v_mul_f32 v4, s3, v4
  v_mul_f32 v5, s3, v5
  v_mul_f32 v6, s3, v6
  v_mul_f32 v7, s3, v7
  s_waitcnt lgkmcnt(0)
  s_barrier
""")
    stamp(2)
    e(f"""
  s_cmp_ge_u32 s35, 14
  s_cbranch_scc1 K2_NOMM
  s_and_b32 s37, s35, 1
  v_lshrrev_b32 v20, 5, v1
  v_lshlrev_b32 v8, 3, v20
  v_bfe_u32 v9, v1, 2, 2
  v_add_u32 v8, v8, v9
  v_lshlrev_b32 v8, 6, v8
  v_bfe_u32 v9, v1, 4, 1
  v_lshl_add_u32 v8, v9, 5, v8
  v_and_b32 v9, 3, v1
  v_lshl_add_u32 v8, v9, 3, v8
  s_lshl_b32 s3, s37, 12
  v_add_u32 v8, s3, v8
""")
    for ks in range(4):
        e(f"  ds_read_b64_tr_b16 v[{100+4*ks}:{101+4*ks}], v8 offset:{L_WA+ks*1024}")
        e(f"  ds_read_b64_tr_b16 v[{102+4*ks}:{103+4*ks}], v8 offset:{L_WA+ks*1024+256}")
    e("  s_waitcnt lgkmcnt(0)")
    D = 8
    for ks in range(4):
        c = "0" if ks == 0 else f"v[{D}:{D+15}]"
        e(f"  v_mfma_f32_32x32x16_bf16 v[{D}:{D+15}], v[{64+4*ks}:{67+4*ks}], v[{100+4*ks}:{103+4*ks}], {c}")
    e(f"""
  v_lshrrev_b32 v24, 5, v1
  v_lshlrev_b32 v24, 9, v24
  v_and_b32 v25, 31, v1
  v_lshl_add_u32 v24, v25, 2, v24
  s_lshl_b32 s3, s36, 12
  s_cmp_eq_u32 s37, 0
  s_cselect_b32 s38, {L_P}, {L_AGG}
  s_cselect_b32 s39, {f32bits(NLOG2E):#x}, 1.0
  s_add_u32 s3, s3, s38
  v_add_u32 v24, s3, v24
""")
    e("  s_nop 7\n  s_nop 3")
    for r in range(16):
        e(f"  v_mul_f32 v{D+r}, s39, v{D+r}")
    for r in range(4):
        e(f"  ds_write_b32 v24, v{D+r} offset:{(8*(r>>2)+(r&3))*128}")
    e("  s_cmp_eq_u32 s36, 6\n  s_cbranch_scc1 K2_NOMM")
    for r in range(4,16):
        e(f"  ds_write_b32 v24, v{D+r} offset:{(8*(r>>2)+(r&3))*128}")
    lab("K2_NOMM")
    e(f"""
  v_mov_b32 v24, 1
  s_mov_b32 s38, {SSTR}
  s_mov_b32 s39, {CAP}
  v_mov_b32 v25, 0
  v_mov_b32 v27, {L_SLOT}
  s_waitcnt vmcnt(0)
""")
    stamp(3)
    def rank_issue(mask, rp, rk, lbl):
        e(f"""  s_mov_b64 exec, {mask}
  s_cbranch_execz {lbl}
  v_lshlrev_b32 v{rk}, 2, v{rp+1}
  ds_add_rtn_u32 v{rk}, v{rk}, v24 offset:{L_CNT}
{lbl}:""")
    def rank_use(mask, rp, rk, lbl):
        e(f"""  s_mov_b64 exec, {mask}
  s_cbranch_execz {lbl}
  v_cmp_gt_u32 vcc, s39, v{rk}
  v_mad_u32_u24 v{rp+1}, s38, v{rp+1}, v27
  v_lshl_add_u32 v{rp+1}, v{rk}, 2, v{rp+1}
  v_cndmask_b32 v26, 1, v25, vcc
  v_or_b32 v25, v25, v26
  s_and_b64 exec, exec, vcc
  s_cbranch_execz {lbl}
  ds_write_b32 v{rp+1}, v{rp}
{lbl}:""")
    for m in range(8):
        rank_issue(f"s[{58+2*m}:{59+2*m}]", 28+2*m, 100+m, f"K2_A0_{m}")
    for m in range(8):
        rank_issue(f"s[{74+2*m}:{75+2*m}]", 44+2*m, 108+m, f"K2_A1_{m}")
    e("  s_mov_b64 exec, -1\n  s_waitcnt lgkmcnt(0)")
    for m in range(8):
        rank_use(f"s[{58+2*m}:{59+2*m}]", 28+2*m, 100+m, f"K2_B0_{m}")
    for m in range(8):
        rank_use(f"s[{74+2*m}:{75+2*m}]", 44+2*m, 108+m, f"K2_B1_{m}")
    e("  s_mov_b64 exec, -1")
    e(f"""
  v_and_b32 v22, 31, v1
  v_add_u32 v22, 64, v22
  s_movk_i32 s36, 512
K2_XR:
""")
    e("  s_mov_b64 s[40:41], 0")
    for m in range(8):
        e(f"""  v_cmp_gt_u32 vcc, v{92+m}, v22
  s_nop 1
  s_or_b64 s[40:41], s[40:41], vcc""")
    e(f"""  s_cmp_eq_u64 s[40:41], 0
  s_cbranch_scc1 K2_XR_DONE
""")
    for m in range(8):
        e(f"""  v_cmp_gt_u32 vcc, v{92+m}, v22
  s_nop 1
  s_mov_b64 exec, vcc
  s_cbranch_execz K2_XR_{m}
  buffer_load_dwordx2 v[28:29], v{84+m}, s[16:19], s36 offen
  s_waitcnt vmcnt(0)
  v_lshlrev_b32 v100, 2, v29
  ds_add_rtn_u32 v100, v100, v24 offset:{L_CNT}
  s_waitcnt lgkmcnt(0)
  v_cmp_gt_u32 vcc, s39, v100
  v_mad_u32_u24 v29, s38, v29, v27
  v_lshl_add_u32 v29, v100, 2, v29
  v_cndmask_b32 v26, 1, v25, vcc
  v_or_b32 v25, v25, v26
  s_and_b64 exec, exec, vcc
  s_cbranch_execz K2_XR_{m}
  ds_write_b32 v29, v28
K2_XR_{m}:
  s_mov_b64 exec, -1""")
    e(f"""
  v_add_u32 v22, 32, v22
  s_add_u32 s36, s36, 256
  s_branch K2_XR
K2_XR_DONE:
  v_cmp_ne_u32 vcc, 0, v25
  s_nop 1
  s_cmp_eq_u64 vcc, 0
  s_cbranch_scc1 K2_NOOV
  v_mov_b32 v16, 1
  v_mov_b32 v17, {L_FLAG}
  ds_write_b32 v17, v16
K2_NOOV:
  s_waitcnt lgkmcnt(0)
  s_barrier
""")
    stamp(4)
    e(f"""
  v_mov_b32 v17, {L_FLAG}
  ds_read_b32 v16, v17
  s_waitcnt lgkmcnt(0)
  v_readfirstlane_b32 s3, v16
  s_nop 3
  s_cmp_lg_u32 s3, 0
  s_cbranch_scc1 K2_SLOW
  v_cmp_gt_u32 vcc, {NSL}, v0
  s_and_saveexec_b64 s[56:57], vcc
  s_cbranch_execz K2_S0
  v_lshlrev_b32 v8, 2, v0
  ds_read_b32 v9, v8 offset:{L_CNT}
  v_mov_b32 v11, 1
  s_waitcnt lgkmcnt(0)
  v_lshlrev_b32 v10, 2, v9
  ds_add_rtn_u32 v12, v10, v11 offset:{L_HIST}
  s_waitcnt lgkmcnt(0)
K2_S0:
  s_mov_b64 exec, s[56:57]
  s_barrier                                 ; B2
  s_cmp_ge_u32 s35, 4
  s_cbranch_scc1 K2_S1
  v_lshlrev_b32 v13, 3, v1
  v_sub_u32 v13, {126*4}, v13
  ds_read_b64 v[14:15], v13 offset:{L_HIST}
  s_waitcnt lgkmcnt(0)
  v_add_u32 v16, v14, v15
""")
    scan64(16)
    e(f"""
  v_sub_u32 v18, v16, v14
  v_sub_u32 v19, v18, v15                  ; start(127-2l)
  v_mov_b32 v20, v18
  v_mov_b32 v21, v19
  ds_write_b64 v13, v[20:21] offset:{L_START}
  v_cmp_gt_u32 vcc, {NSL}, v0
  s_and_saveexec_b64 s[56:57], vcc
  s_cbranch_execz K2_S2
  s_waitcnt lgkmcnt(0)
  ds_read_b32 v14, v10 offset:{L_START}
  s_waitcnt lgkmcnt(0)
  v_add_lshl_u32 v14, v14, v12, 2
  v_lshl_or_b32 v15, v9, 16, v0
  ds_write_b32 v14, v15 offset:{L_SORT}
K2_S2:
  s_mov_b64 exec, s[56:57]
K2_S1:
  s_waitcnt lgkmcnt(0)
  s_barrier                                 ; B3
""")
    stamp(5)
    e(f"""
  v_lshlrev_b32 v8, 5, v1
  v_min_u32 v8, {24*32}, v8
  ds_read_b32 v9, v8 offset:{L_SORT}
  v_cmp_gt_u32 vcc, 25, v1
  s_waitcnt lgkmcnt(0)
  v_lshrrev_b32 v9, 16, v9
  v_cndmask_b32 v9, 0, v9, vcc
  v_mov_b32 v60, v9
""")
    scan64(60)
    e(f"""
  v_readlane_b32 s58, v60, 63              ; total T
  v_sub_u32 v60, v60, v9
  s_nop 2
  s_mul_i32 s59, s58, s35
  s_lshr_b32 s59, s59, 4                   ; cur
  s_add_u32 s3, s35, 1
  s_mul_i32 s60, s58, s3
  s_lshr_b32 s60, s60, 4                   ; end
""")
    stampv(8, 58); stampc(9)
    e(f"""
  v_and_b32 v61, 7, v1
  v_lshlrev_b32 v61, 4, v61                ; q*16
  v_lshrrev_b32 v62, 3, v1                 ; group
  v_mov_b32 v17, v61
  v_mov_b32 v19, v61
  v_mov_b32 v21, v61
  v_mov_b32 v23, v61
  s_mov_b32 s67, 0
  s_mov_b32 s68, 0
  s_mov_b32 s81, 0
  s_mov_b32 s72, 0
  s_mov_b32 s74, 0
  s_mov_b32 s76, 0
""")
    if STAMP: e("  s_memtime s[70:71]\n  s_waitcnt lgkmcnt(0)")
    e(f"""
K2_SEG:
  s_cmp_ge_u32 s59, s60
  s_cbranch_scc1 K2_DONE
  v_cmp_ge_u32 vcc, s59, v60
  s_nop 1
  s_bcnt1_i32_b64 s61, vcc
  s_sub_u32 s61, s61, 1                    ; set
  s_add_u32 s62, s61, 1
  s_nop 1
  v_readlane_b32 s63, v60, s61             ; S_set
  v_readlane_b32 s64, v60, s62             ; S_set+1
  s_lshl_b32 s3, s61, 5
  v_lshl_add_u32 v8, v62, 2, s3
  ds_read_b32 v9, v8 offset:{L_SORT}
  s_min_u32 s64, s64, s60
  s_sub_u32 s65, s64, s59                  ; n
  s_add_u32 s67, s67, 1
  s_add_u32 s68, s68, s65
  s_sub_u32 s66, s59, s63                  ; i0
  s_mov_b32 s59, s64
  s_lshl_b32 s66, s66, 2
  s_mov_b32 s3, {SSTR}
  s_waitcnt lgkmcnt(0)
  v_and_b32 v9, 0xffff, v9
  v_mul_u32_u24 v52, s3, v9
  s_add_u32 s66, s66, {L_SLOT}
  v_add_u32 v52, s66, v52
  v_lshl_add_u32 v53, v9, 7, v61
  ds_read_b128 v[8:11], v53 offset:{L_P}
  s_cmp_eq_u32 s66, {L_SLOT}
  s_cbranch_scc1 K2_PRIM
  v_mov_b32 v12, 0
  v_mov_b32 v13, 0
  v_mov_b32 v14, 0
  v_mov_b32 v15, 0
  s_mov_b32 s69, 0
  s_mov_b32 s79, s35
K2_CR:
  s_cmp_eq_u32 s79, 0
  s_cbranch_scc1 K2_CRD
  s_sub_u32 s79, s79, 1
  s_mul_i32 s3, s58, s79
  s_lshr_b32 s3, s3, 4
  s_cmp_gt_u32 s3, s63
  s_cbranch_scc0 K2_CRD
  s_add_u32 s69, s69, 1
  s_branch K2_CR
K2_CRD:
  s_mov_b32 s80, 1
  s_branch K2_PRIM2
K2_PRIM:
  ds_read_b128 v[12:15], v53 offset:{L_AGG}
  s_mov_b32 s80, 0
K2_PRIM2:
""")
    IDX = [16,18,20,22]; EE = [24,25,26,27]; T = [28,32,36,40]
    for k in range(4):
        e(f"  ds_read_u16 v{IDX[k]}, v52 offset:{4*k}")
    for k in range(4):
        e(f"  ds_read_u16_d16_hi v{EE[k]}, v52 offset:{4*k+2}")
    e("  s_waitcnt lgkmcnt(4)")
    for k in range(4):
        e(f"  buffer_load_dwordx4 v[{T[k]}:{T[k]+3}], v[{IDX[k]}:{IDX[k]+1}], s[24:27], 0 idxen offen")
    e("  s_waitcnt lgkmcnt(0)")
    def compute(k, pre=None, mid=None):
        ep = EE[k] & ~1
        sel = "op_sel_hi:[0,1,1]" if (EE[k] & 1) == 0 else "op_sel:[1,0,0] op_sel_hi:[1,1,1]"
        t = T[k]
        e(f"  v_pk_fma_f32 v[44:45], v[{ep}:{ep+1}], v[4:5], v[8:9] {sel}")
        e(f"  v_pk_fma_f32 v[46:47], v[{ep}:{ep+1}], v[6:7], v[10:11] {sel}")
        if pre: e(pre)
        for j in range(4): e(f"  v_exp_f32 v{44+j}, v{44+j}")
        if mid: e(mid)
        for j in range(4): e(f"  v_fma_mix_f32 v{48+j}, v{t+j}, v{44+j}, 1.0 op_sel_hi:[1,0,0]")
        for j in range(4): e(f"  v_rcp_f32 v{48+j}, v{48+j}")
        e(f"  v_pk_fma_f32 v[12:13], v[48:49], v[{t}:{t+1}], v[12:13]")
        e(f"  v_pk_fma_f32 v[14:15], v[50:51], v[{t+2}:{t+3}], v[14:15]")
    if STAMP:
        e("""  s_cmp_lg_u32 s67, 1
  s_cbranch_scc1 K2_ST1
  s_memtime s[76:77]
  s_waitcnt vmcnt(3) lgkmcnt(0)
  s_memtime s[72:73]
  s_waitcnt lgkmcnt(0)
K2_ST1:""")
    def stage(k):
        e("  s_waitcnt vmcnt(3)")
        if "nolds" in EXP: compute(k)
        else: compute(k, pre=f"  ds_read_u16 v{IDX[k]}, v52 offset:{16+4*k}",
                   mid=f"  ds_read_u16_d16_hi v{EE[k]}, v52 offset:{16+4*k+2}")
        e("  s_waitcnt lgkmcnt(1)")
        if "nogather" not in EXP: e(f"  buffer_load_dwordx4 v[{T[k]}:{T[k]+3}], v[{IDX[k]}:{IDX[k]+1}], s[24:27], 0 idxen offen")
    e("""  s_cmp_le_u32 s65, 4
  s_cbranch_scc1 K2_TS
  s_sub_u32 s65, s65, 4
  s_cmp_lt_u32 s65, 4
  s_cbranch_scc1 K2_CHK""")
    lab("K2_RING")
    for k in range(4):
        stage(k)
    e("""  v_add_u32 v52, 16, v52
  s_sub_u32 s65, s65, 4
  s_cmp_ge_u32 s65, 4
  s_cbranch_scc1 K2_RING""")
    lab("K2_CHK")
    e("  s_cmp_eq_u32 s65, 0\n  s_cbranch_scc1 K2_T0")
    for k in range(3):
        stage(k)
        if k < 2: e(f"  s_cmp_eq_u32 s65, {k+1}\n  s_cbranch_scc1 K2_T{k+1}")
    for ent in (3,0,1,2):
        lab(f"K2_T{ent}")
        e("  s_waitcnt lgkmcnt(0)")
        for j in range(4):
            k = (ent+j) % 4
            e(f"  s_waitcnt vmcnt({3-j})")
            compute(k)
        e("  s_branch K2_FLUSH")
    lab("K2_TS")
    for j in range(4):
        e(f"  s_waitcnt vmcnt({3-j})")
        compute(j)
        if j < 3: e(f"  s_cmp_eq_u32 s65, {j+1}\n  s_cbranch_scc1 K2_FLUSH")
    e(f"""
K2_FLUSH:
""")
    if STAMP:
        e("""  s_cmp_lg_u32 s67, 1
  s_cbranch_scc1 K2_ST2
  s_memtime s[74:75]
  s_waitcnt lgkmcnt(0)
  s_mov_b32 s78, s68
K2_ST2:""")
    e(f"""
  s_cmp_eq_u32 s80, 0
  s_cbranch_scc0 K2_FLC
  ds_write_b128 v53, v[12:15] offset:{L_AGG}
  s_branch K2_SEG
K2_FLC:
  v_mov_b32 v54, v12
  v_mov_b32 v55, v13
  v_mov_b32 v56, v14
  v_mov_b32 v57, v15
  v_mov_b32 v58, v53
  s_add_u32 s81, s69, 1
  v_mov_b32 v8, s81
  v_mov_b32 v9, {L_FLAG+4}
  ds_max_u32 v9, v8
  s_branch K2_SEG
K2_DONE:
  s_waitcnt lgkmcnt(0)
""")
    stamp(6); stampc(10); stampv(11, 67); stampv(12, 68)
    if STAMP:
        e("  s_sub_u32 s76, s76, s70\n  s_sub_u32 s72, s72, s70\n  s_sub_u32 s74, s74, s70")
        stampv(13, 76); stampv(14, 72); stampv(15, 74)
        e("  s_getreg_b32 s76, hwreg(HW_REG_HW_ID)"); stampv(8, 76)
    e(f"""
  s_barrier                                 ; B4
  v_mov_b32 v9, {L_FLAG+4}
  ds_read_b32 v8, v9
  s_mov_b32 s82, 1
  s_waitcnt lgkmcnt(0)
  v_readfirstlane_b32 s83, v8
  s_nop 3
K2_CRND:
  s_cmp_gt_u32 s82, s83
  s_cbranch_scc1 K2_EPI
  s_cmp_eq_u32 s82, s81
  s_cbranch_scc0 K2_CRN2
  ds_read_b128 v[8:11], v58 offset:{L_AGG}
  s_waitcnt lgkmcnt(0)
  v_add_f32 v8, v8, v54
  v_add_f32 v9, v9, v55
  v_add_f32 v10, v10, v56
  v_add_f32 v11, v11, v57
  ds_write_b128 v58, v[8:11] offset:{L_AGG}
  s_waitcnt lgkmcnt(0)
K2_CRN2:
  s_barrier
  s_add_u32 s82, s82, 1
  s_branch K2_CRND
K2_EPI:
  v_cmp_gt_u32 vcc, {NPB*4}, v0
  s_and_saveexec_b64 s[56:57], vcc
  s_cbranch_execz K2_END
  v_lshlrev_b32 v1, 5, v0
  ds_read_b128 v[4:7], v1 offset:{L_AGG}
  ds_read_b128 v[8:11], v1 offset:{L_AGG+16}
  v_lshrrev_b32 v2, 2, v0
  s_mul_i32 s3, s33, {NPB}
  v_add_u32 v2, s3, v2
  v_lshlrev_b32 v2, 7, v2
  v_and_b32 v3, 3, v0
  v_lshl_add_u32 v2, v3, 4, v2
  s_lshl_b32 s3, s34, 6
  v_add_u32 v2, s3, v2
  s_mov_b32 s3, {f32bits(NLOG2E):#x}
  s_waitcnt lgkmcnt(0)
""")
    for j in range(8): e(f"  v_mul_f32 v{12+j}, s3, v{4+j}")
    for j in range(8): e(f"  v_exp_f32 v{12+j}, v{12+j}")
    e("  s_nop 0")
    for j in range(8): e(f"  v_add_f32 v{12+j}, 1.0, v{12+j}")
    for j in range(8): e(f"  v_rcp_f32 v{12+j}, v{12+j}")
    e("  s_nop 0")
    for j in range(8): e(f"  v_mul_f32 v{4+j}, v{4+j}, v{12+j}")
    for j in range(4): e(f"  v_cvt_pk_bf16_f32 v{20+j}, v{4+2*j}, v{5+2*j}")
    e(f"""
  buffer_store_dwordx4 v[20:23], v2, s[48:51], 0 offen
""")
    if STAMP:
        e("  s_waitcnt vmcnt(0)"); e("  s_mov_b64 exec, s[56:57]"); stamp(7)
    e("""
K2_END:
  s_endpgm
""")
    WBS = L_WA
    e(f"""
K2_SLOW:
  s_barrier
  v_cmp_gt_u32 vcc, 256, v0
  s_and_saveexec_b64 s[56:57], vcc
  s_cbranch_execz K2_SL0
  v_lshrrev_b32 v8, 2, v0
  v_lshlrev_b32 v8, 7, v8
  v_and_b32 v9, 3, v0
  v_lshl_add_u32 v8, v9, 4, v8
  s_lshl_b32 s3, s34, 6
  s_add_u32 s3, s3, 8192
  v_add_u32 v8, s3, v8
  buffer_load_dwordx4 v[12:15], v8, s[28:31], 0 offen
  v_lshlrev_b32 v9, 4, v0
  s_waitcnt vmcnt(0)
  ds_write_b128 v9, v[12:15] offset:{WBS}
K2_SL0:
  s_mov_b64 exec, s[56:57]
  s_waitcnt lgkmcnt(0)
  s_barrier
  v_and_b32 v61, 7, v1
  v_lshlrev_b32 v63, 3, v61
  v_lshlrev_b32 v61, 4, v61                ; q*16
  v_lshrrev_b32 v62, 3, v1                 ; group
  v_mov_b32 v17, v61
  s_mov_b32 s58, s35                       ; cell
  s_mov_b32 s81, 0
K2_SLC:
  s_cmp_ge_u32 s58, {W}
  s_cbranch_scc1 K2_DONE
  s_lshl_b32 s3, s33, 10
  s_lshl_b32 s59, s58, 2
  s_add_u32 s3, s3, s59
  v_mov_b32 v8, s3
  buffer_load_dword v9, v8, s[20:23], 0 offen
  s_waitcnt vmcnt(0)
  v_readfirstlane_b32 s60, v9
  s_nop 3
  s_lshr_b32 s61, s60, 16                  ; cnt
  s_and_b32 s60, s60, 0xffff               ; start
  s_mul_i32 s62, s58, {REC_STRIDE}
  s_mov_b32 s63, 0                         ; j0
K2_SLJ:
  s_cmp_ge_u32 s63, s61
  s_cbranch_scc1 K2_SLN
  v_add_u32 v8, s63, v62                   ; j
  v_cmp_gt_u32 vcc, s61, v8
  s_and_saveexec_b64 s[56:57], vcc
  s_cbranch_execz K2_SLX
  v_add_u32 v8, s60, v8
  v_lshl_add_u32 v8, v8, 3, s62
  buffer_load_dwordx2 v[10:11], v8, s[16:19], 0 offen
  s_waitcnt vmcnt(0)
  v_and_b32 v16, 0xffff, v10               ; src
  v_and_b32 v24, 0xffff0000, v10           ; e
  v_lshl_add_u32 v53, v11, 7, v61
  ds_read_b128 v[12:15], v53 offset:{L_P}
  buffer_load_dwordx4 v[28:31], v[16:17], s[24:27], 0 idxen offen
  v_lshlrev_b32 v18, 7, v16
  v_mov_b32 v19, v63
  v_mov_b32 v44, 0
  v_mov_b32 v45, 0
  v_mov_b32 v46, 0
  v_mov_b32 v47, 0
  s_mov_b32 s64, 0
K2_SLK:
  buffer_load_dwordx4 v[32:35], v18, s[12:15], s64 offen
""")
    for kk in range(8):
        e(f"  ds_read_b64 v[{64+2*kk}:{65+2*kk}], v19 offset:{WBS+kk*64}")
    e("  s_waitcnt vmcnt(0) lgkmcnt(0)")
    for kk in range(8):
        xr = 32 + kk//2
        if kk % 2 == 0: e(f"  v_lshlrev_b32 v36, 16, v{xr}")
        else: e(f"  v_and_b32 v36, 0xffff0000, v{xr}")
        w0, w1 = 64+2*kk, 65+2*kk
        e(f"""  v_lshlrev_b32 v37, 16, v{w0}
  v_and_b32 v38, 0xffff0000, v{w0}
  v_lshlrev_b32 v39, 16, v{w1}
  v_and_b32 v40, 0xffff0000, v{w1}
  v_fmac_f32 v44, v36, v37
  v_fmac_f32 v45, v36, v38
  v_fmac_f32 v46, v36, v39
  v_fmac_f32 v47, v36, v40""")
    e(f"""
  v_add_u32 v19, 512, v19
  s_add_u32 s64, s64, 16
  s_cmp_lt_u32 s64, 128
  s_cbranch_scc1 K2_SLK
  s_mov_b32 s3, {f32bits(NLOG2E):#x}
""")
    for j in range(4):
        e(f"  v_fma_f32 v{12+j}, v24, v{4+j}, v{12+j}")
    for j in range(4):
        e(f"  v_fma_f32 v{12+j}, v{44+j}, s3, v{12+j}")
    for j in range(4): e(f"  v_exp_f32 v{12+j}, v{12+j}")
    e("  s_nop 0")
    for j in range(4): e(f"  v_add_f32 v{12+j}, 1.0, v{12+j}")
    for j in range(4): e(f"  v_rcp_f32 v{12+j}, v{12+j}")
    e("  s_nop 0")
    for j in range(4): e(f"  v_mul_f32 v{12+j}, v{12+j}, v{28+j}")
    for j in range(4): e(f"  ds_add_f32 v53, v{12+j} offset:{L_AGG+4*j}")
    e(f"""
K2_SLX:
  s_mov_b64 exec, s[56:57]
  s_add_u32 s63, s63, 8
  s_branch K2_SLJ
K2_SLN:
  s_add_u32 s58, s58, 16
  s_branch K2_SLC
""")

def descr(name, vgpr, sgpr):
    e(f"""
.section .rodata,"a"
.p2align 6
.amdhsa_kernel {name}
  .amdhsa_next_free_vgpr {vgpr}
  .amdhsa_next_free_sgpr {sgpr}
  .amdhsa_accum_offset {((vgpr+3)//4)*4}
  .amdhsa_group_segment_fixed_size 0
  .amdhsa_kernarg_size 80
  .amdhsa_user_sgpr_count 2
  .amdhsa_user_sgpr_kernarg_segment_ptr 1
  .amdhsa_system_sgpr_workgroup_id_x 1
.end_amdhsa_kernel
""")

def main():
    e(f"""; Edge-gated MPNN forward in two launches (generated by gen/gen.py; hand-designed).
; @launch kernel=k1_kernel grid=({W+NTW},1,1) block=(512,1,1) lds={K1_LDS}
; @launch kernel=k2_kernel grid=(256,1,1) block=(1024,1,1) lds={K2_LDS}
.amdgcn_target "amdgcn-amd-amdhsa--gfx950"
""")
    k1()
    k2()
    descr("k1_kernel", 128 if STAMP else 96, 102 if STAMP else 96)
    descr("k2_kernel", 128, 102 if STAMP else 100)
    path = sys.argv[1] if len(sys.argv) > 1 else f"cdna_kernels/{NAME}.s"
    open(path, "w").write("\n".join(out) + "\n")
main()
```

```python
import __main__ as G
def k2():
    g = G.__dict__
    globals().update({k: v for k, v in g.items() if not k.startswith("__")})
    e(f"""
.text
.globl k2_kernel
.p2align 8
.type k2_kernel,@function
k2_kernel:
  s_cmp_ge_u32 s2, 256
  s_cbranch_scc1 K2_END
  s_load_dwordx2 s[4:5], s[0:1], 72        ; ws
  s_load_dwordx2 s[6:7], s[0:1], 0         ; x
  s_load_dwordx2 s[8:9], s[0:1], 32        ; u_w
  s_load_dwordx4 s[44:47], s[0:1], 48      ; g_w, out
  v_readfirstlane_b32 s35, v0
  v_and_b32 v1, 63, v0                     ; lane
  s_lshr_b32 s33, s2, 1                    ; bucket
  s_and_b32 s34, s2, 1                     ; half
  v_and_b32 v2, 7, v1
  v_lshrrev_b32 v3, 5, v1
  s_lshr_b32 s35, s35, 6                   ; wave
  v_lshl_add_u32 v2, v2, 1, v3
  s_lshl_b32 s92, s33, 10
  s_lshl_b32 s3, s35, 6
  s_add_u32 s92, s92, s3
  s_add_u32 s92, s92, {WS_OFFS}
  v_lshlrev_b32 v4, 2, v2
  s_lshl_b32 s38, s34, 6                   ; h*64
  s_waitcnt lgkmcnt(0)
""")
    stamp_init(4, 1); stamp(0)
    srd(16, 4, 5, WS_USED)
    e(f"""
  s_cmp_ge_u32 s35, 8
  s_cbranch_scc1 K2_NOW
  s_cmp_lt_u32 s35, 4
  s_cselect_b32 s40, s44, s8
  s_cselect_b32 s41, s45, s9
  v_and_b32 v5, 255, v0
  v_lshrrev_b32 v6, 2, v5
  v_and_b32 v7, 3, v0
  v_lshlrev_b32 v6, 7, v6
  v_lshl_add_u32 v6, v7, 4, v6
  v_add_u32 v6, s38, v6
  global_load_dwordx4 v[8:11], v6, s[40:41]
K2_NOW:
  buffer_load_dword v4, v4, s[16:19], s92 offen
  s_cmp_ge_u32 s35, 14
  s_cbranch_scc1 K2_NOX
""")
    srd(12, 6, 7, N*128)
    e(f"""
  s_lshr_b32 s36, s35, 1
  s_mul_i32 s3, s33, {NPB}
  s_lshl_b32 s37, s36, 5
  s_add_u32 s3, s3, s37
  v_and_b32 v12, 31, v1
  v_add_u32 v13, s3, v12
  v_lshlrev_b32 v13, 7, v13
  v_lshl_add_u32 v13, v3, 4, v13
""")
    for ks in range(4):
        e(f"  buffer_load_dwordx4 v[{64+4*ks}:{67+4*ks}], v13, s[12:15], 0 offen offset:{32*ks}")
    e(f"""
  s_branch K2_INIT
K2_NOX:
  s_cmp_eq_u32 s35, 14
  s_cbranch_scc1 K2_INIT
  v_and_b32 v12, 31, v1
  v_lshlrev_b32 v12, 1, v12
  s_add_u32 s3, s38, {128*128}
  v_add_u32 v12, s3, v12
  global_load_ushort v14, v12, s[44:45]
  v_min_u32 v12, {NTW//4-1}, v1
  v_lshlrev_b32 v12, 4, v12
  s_mov_b32 s3, {WS_FLAGS}
  buffer_load_dwordx4 v[16:19], v12, s[16:19], s3 offen
K2_INIT:
  v_mov_b32 v24, {DUMMY}
  v_mov_b32 v25, {DUMMY}
  v_mov_b32 v26, {DUMMY}
  v_mov_b32 v27, {DUMMY}
  v_lshlrev_b32 v21, 4, v0
  v_add_u32 v21, {L_SLOT}, v21
  ds_write_b128 v21, v[24:27] offset:0
  ds_write_b128 v21, v[24:27] offset:16384
  ds_write_b128 v21, v[24:27] offset:32768
  ds_write_b128 v21, v[24:27] offset:49152
  s_cmp_ge_u32 s35, 6
  s_cbranch_scc1 K2_Z
  s_movk_i32 s3, {SSTR}
  v_mov_b32 v22, {L_SLOT}
  v_mad_u32_u24 v22, v0, s3, v22
  v_cmp_gt_u32 vcc, 256, v0
  v_lshlrev_b32 v23, 2, v0
  v_cndmask_b32 v22, 0, v22, vcc
  ds_write_b32 v23, v22 offset:{L_CNT}
K2_Z:
  s_movk_i32 s3, {REC_STRIDE}
  v_mul_u32_u24 v5, s3, v2
  v_and_b32 v22, 31, v1                    ; j
  v_lshlrev_b32 v7, 3, v22                 ; j*8
  s_mul_i32 s37, s35, {16*REC_STRIDE}
  s_cmp_ge_u32 s35, 14
  s_cbranch_scc1 K2_W0
  s_waitcnt vmcnt(4)
  s_branch K2_W1
K2_W0:
  s_cmp_eq_u32 s35, 14
  s_cbranch_scc1 K2_W2
  s_waitcnt vmcnt(2)
  s_branch K2_W1
K2_W2:
  s_waitcnt vmcnt(0)
K2_W1:
""")
    stamp(1)
    e(f"""
  v_and_b32 v6, 0xffff, v4
  v_lshl_add_u32 v5, v6, 3, v5
  v_lshrrev_b32 v6, 16, v4
  s_nop 0
""")
    for m in range(8):
        e(f"""  v_add_u32_dpp v{84+m}, v5, v7 row_newbcast:{m} row_mask:0xf bank_mask:0xf
  v_mov_b32_dpp v{92+m}, v6 row_newbcast:{m} row_mask:0xf bank_mask:0xf""")
    for m in range(8):
        e(f"  v_cmp_gt_u32 s[{58+2*m}:{59+2*m}], v{92+m}, v22")
    for m in range(8):
        e(f"""  s_or_b64 exec, s[{58+2*m}:{59+2*m}], 1
  buffer_load_dwordx2 v[{28+2*m}:{29+2*m}], v{84+m}, s[16:19], s37 offen""")
    e(f"""
  s_mov_b64 exec, -1
  v_cmp_lt_u32 vcc, 32, v6
  s_mov_b32 s43, 0
  s_mov_b32 s39, 0
  s_and_b32 s40, vcc_lo, 0xff
  s_and_b32 s41, vcc_hi, 0xff
  s_cmp_ge_u32 s35, 14
  s_cbranch_scc1 K2_X0
  s_waitcnt vmcnt(8)
K2_X0:
  s_cmp_eq_u64 s[40:41], 0
  s_cbranch_scc1 K2_XDONE
  v_cmp_lt_u32 vcc, 96, v6
  v_lshlrev_b32 v23, 3, v1                 ; lane*8
  s_add_u32 s37, s37, 256
  s_cmp_lg_u64 vcc, 0
  s_cselect_b32 s39, 1, 0
""")
    for x in range(8):
        e(f"""  s_ff1_i32_b64 s42, s[40:41]
  s_bitset0_b64 s[40:41], s42
  v_readlane_b32 s90, v5, s42
  v_readlane_b32 s91, v6, s42
  s_add_u32 s43, s43, 1
  s_add_u32 s90, s90, s37
  s_sub_u32 s91, s91, 32
  v_cmp_gt_u32 s[{74+2*x}:{75+2*x}], s91, v1
  s_nop 0
  s_mov_b64 exec, s[{74+2*x}:{75+2*x}]
  buffer_load_dwordx2 v[{44+2*x}:{45+2*x}], v23, s[16:19], s90 offen
  s_mov_b64 exec, -1
  s_cmp_eq_u64 s[40:41], 0
  s_cbranch_scc1 K2_XDONE""")
    e(f"""  s_mov_b32 s39, 1
K2_XDONE:
  s_cmp_ge_u32 s35, 8
  s_cbranch_scc1 K2_NOW2
  v_lshlrev_b32 v20, 4, v0
  v_add_u32 v20, {L_WA}, v20
  ds_write_b128 v20, v[8:11]
K2_NOW2:
  s_cmp_lg_u32 s35, 15
  s_cbranch_scc1 K2_NOF
  s_waitcnt vmcnt(8)
  v_or3_b32 v16, v16, v17, v18
  v_or_b32 v16, v16, v19
  v_cmp_ne_u32 vcc, 0, v16
  s_mov_b32 s3, {f32bits(NLOG2E):#x}
  v_lshlrev_b32 v14, 16, v14
  v_mul_f32 v14, s3, v14
  s_cmp_lg_u64 vcc, 0
  s_cselect_b32 s3, 1, {FORCE_SLOW}
  v_mov_b32 v16, s3
  v_mov_b32 v17, 0
  v_mov_b32 v18, {L_FLAG}
  ds_write_b64 v18, v[16:17]
  v_lshlrev_b32 v12, 2, v1
  v_cmp_gt_u32 vcc, 32, v1
  s_and_saveexec_b64 s[56:57], vcc
  ds_write_b32 v12, v14 offset:{L_C}
  s_mov_b64 exec, s[56:57]
K2_NOF:
  s_waitcnt lgkmcnt(0)
  s_barrier
""")
    stamp(2)
    e(f"""
  s_cmp_eq_u32 s39, 0
  s_cbranch_scc1 K2_NOGEN
  v_mov_b32 v16, 1
  v_mov_b32 v18, {L_FLAG}
  ds_write_b32 v18, v16
K2_NOGEN:
  s_cmp_ge_u32 s35, 14
  s_cbranch_scc1 K2_NOMM
  s_and_b32 s37, s35, 1
  v_lshlrev_b32 v8, 3, v3
  v_bfe_u32 v9, v1, 2, 2
  v_add_u32 v8, v8, v9
  v_lshlrev_b32 v8, 6, v8
  v_bfe_u32 v9, v1, 4, 1
  v_lshl_add_u32 v8, v9, 5, v8
  v_and_b32 v9, 3, v1
  v_lshl_add_u32 v8, v9, 3, v8
  s_lshl_b32 s3, s37, 12
  s_add_u32 s3, s3, {L_WA}
  v_add_u32 v8, s3, v8
""")
    for ks in range(4):
        e(f"  ds_read_b64_tr_b16 v[{100+4*ks}:{101+4*ks}], v8 offset:{ks*1024}")
        e(f"  ds_read_b64_tr_b16 v[{102+4*ks}:{103+4*ks}], v8 offset:{ks*1024+256}")
    e(f"""  ; LDS address: base + (rt*32 + (l&31))*RS + (l>>5)*16
  s_mul_i32 s3, s36, {32*RS}
  s_cmp_eq_u32 s37, 0
  s_cselect_b32 s40, {L_P}, {L_AGG}
  s_add_u32 s3, s3, s40
  s_movk_i32 s40, {RS}
  v_lshl_add_u32 v24, v3, 4, s3
  v_mad_u32_u24 v24, v22, s40, v24
  s_waitcnt lgkmcnt(0)""")
    D = 8
    for ks in range(4):
        c = "0" if ks == 0 else f"v[{D}:{D+15}]"
        e(f"  v_mfma_f32_32x32x16_bf16 v[{D}:{D+15}], v[{100+4*ks}:{103+4*ks}], v[{64+4*ks}:{67+4*ks}], {c}")
    e(f"""  s_cmp_eq_u32 s36, 6
  s_cselect_b32 s40, 0xff, -1
  s_cselect_b32 s41, 0xff, -1
  s_mov_b32 s42, {f32bits(NLOG2E):#x}
  s_cmp_eq_u32 s37, 0
  s_nop 7
  s_cbranch_scc0 K2_NOSC""")
    for r in range(0,16,2):
        e(f"  v_pk_mul_f32 v[{D+r}:{D+r+1}], v[{D+r}:{D+r+1}], s[42:43] op_sel_hi:[1,0]")
    lab("K2_NOSC")
    e("  s_mov_b64 exec, s[40:41]")
    for k in range(4):
        e(f"  ds_write_b128 v24, v[{D+4*k}:{D+4*k+3}] offset:{32*k}")
    e("  s_mov_b64 exec, -1")
    lab("K2_NOMM")
    e(f"""
  s_mul_i32 s3, s34, {HSTRIDE}
  s_add_u32 s3, s3, {WS_TAB}
  s_add_u32 s40, s4, s3
  s_addc_u32 s41, s5, 0
""")
    srd(24, 40, 41, TROWS, stride=128)
    e(f"""
  v_mov_b32 v24, 4
  s_waitcnt vmcnt(0)
""")
    stamp(3)
    for m in range(8):
        e(f"""  s_mov_b64 exec, s[{58+2*m}:{59+2*m}]
  ds_add_rtn_u32 v{100+m}, v{29+2*m}, v24 offset:{L_CNT}""")
    for x in range(8):
        e(f"""  s_cmp_le_u32 s43, {x}
  s_cbranch_scc1 K2_AX
  s_mov_b64 exec, s[{74+2*x}:{75+2*x}]
  ds_add_rtn_u32 v{108+x}, v{45+2*x}, v24 offset:{L_CNT}""")
    lab("K2_AX")
    e("  s_waitcnt lgkmcnt(0)")
    for m in range(8):
        e(f"""  s_mov_b64 exec, s[{58+2*m}:{59+2*m}]
  ds_write_b32 v{100+m}, v{28+2*m}""")
    for x in range(8):
        e(f"""  s_cmp_le_u32 s43, {x}
  s_cbranch_scc1 K2_BX
  s_mov_b64 exec, s[{74+2*x}:{75+2*x}]
  ds_write_b32 v{108+x}, v{44+2*x}""")
    lab("K2_BX")
    e(f"""  s_mov_b64 exec, -1
  s_waitcnt lgkmcnt(0)
  s_barrier
""")
    stamp(4)
    e(f"""
  s_cmp_ge_u32 s35, 4
  s_cbranch_scc1 K2_S0B
  v_cmp_gt_u32 vcc, {NSL}, v0
  s_and_saveexec_b64 s[56:57], vcc
  v_lshlrev_b32 v8, 2, v0
  ds_read_b32 v9, v8 offset:{L_CNT}
  s_movk_i32 s3, {SSTR}
  v_mov_b32 v13, {L_SLOT}
  v_mad_u32_u24 v13, v0, s3, v13
  v_mov_b32 v11, 1
  s_waitcnt lgkmcnt(0)
  v_sub_u32 v9, v9, v13
  v_lshrrev_b32 v9, 2, v9                  ; degree
  v_cmp_lt_u32 vcc, {CAP}, v9
  v_min_u32 v9, 127, v9
  v_lshlrev_b32 v10, 2, v9
  ds_add_rtn_u32 v12, v10, v11 offset:{L_HIST}
  s_cbranch_vccz K2_S0A
  v_mov_b32 v14, {L_FLAG}
  ds_write_b32 v14, v11
K2_S0A:
  s_mov_b64 exec, s[56:57]
  s_waitcnt lgkmcnt(0)
K2_S0B:
  s_barrier                                 ; B2
  s_cmp_ge_u32 s35, 4
  s_cbranch_scc1 K2_S1
  v_lshlrev_b32 v14, 3, v1
  v_sub_u32 v14, {126*4}, v14
  ds_read_b64 v[16:17], v14 offset:{L_HIST}
  s_waitcnt lgkmcnt(0)
  v_add_u32 v18, v16, v17
""")
    scan64(18)
    e(f"""
  v_sub_u32 v20, v18, v16
  v_sub_u32 v21, v20, v17                  ; start(127-2l)
  ds_write_b64 v14, v[20:21] offset:{L_START}
  v_cmp_gt_u32 vcc, {NSL}, v0
  s_and_saveexec_b64 s[56:57], vcc
  ds_read_b32 v14, v10 offset:{L_START}
  s_movk_i32 s3, {RS}
  v_mul_u32_u24 v15, s3, v0
  v_lshl_or_b32 v15, v9, 16, v15           ; | degree << 16
  v_mov_b32 v16, v13
  v_mov_b32 v17, v15
  s_waitcnt lgkmcnt(0)
  v_add_lshl_u32 v14, v14, v12, 3
  ds_write_b64 v14, v[16:17] offset:{L_SORT}
  s_mov_b64 exec, s[56:57]
  s_waitcnt lgkmcnt(0)
K2_S1:
  s_barrier                                 ; B3
""")
    stamp(5)
    e(f"""
  v_lshlrev_b32 v8, 6, v1
  v_min_u32 v8, {24*64}, v8
  ds_read_b32 v9, v8 offset:{L_SORT+4}
  v_mov_b32 v10, 0
  ds_read_b32 v11, v10 offset:{L_FLAG}
  v_and_b32 v61, 7, v1
  v_lshlrev_b32 v61, 4, v61                ; q*16
  ds_read_b128 v[4:7], v61 offset:{L_C}
  v_cmp_gt_u32 vcc, 25, v1
  v_lshrrev_b32 v62, 3, v1
  v_lshlrev_b32 v62, 3, v62                ; group*8
  v_mov_b32 v17, v61
  v_mov_b32 v19, v61
  v_mov_b32 v21, v61
  v_mov_b32 v23, v61
  s_waitcnt lgkmcnt(1)
  v_lshrrev_b32 v9, 16, v9
  v_readfirstlane_b32 s3, v11
  v_cndmask_b32 v9, 0, v9, vcc
  v_mov_b32 v60, v9
  s_cmp_lg_u32 s3, 0
  s_cbranch_scc1 K2_SLOW
""")
    for sh in (1,2,4,8):
        e(f"  s_nop 1\n  v_add_u32_dpp v60, v60, v60 row_shr:{sh} row_mask:0xf bank_mask:0xf")
    e(f"""  s_nop 1
  v_add_u32_dpp v60, v60, v60 row_bcast:15 row_mask:0xa bank_mask:0xf
  s_mov_b32 s81, 0
  s_add_u32 s3, s35, 1
  v_readlane_b32 s58, v60, 31              ; total T
  v_sub_u32 v60, v60, v9
  s_mul_i32 s59, s58, s35
  s_mul_i32 s60, s58, s3
  s_lshr_b32 s59, s59, 4                   ; cur
  s_lshr_b32 s60, s60, 4                   ; end
""")
    if 'ldstamp' not in EXP: stampv(8, 58); stampc(9)
    e("  s_mov_b32 s67, 0\n  s_mov_b32 s68, 0") if STAMP else None
    PRIO = os.environ.get("PRIO", "")
    if PRIO:
        a, b_, c_ = [int(v) for v in PRIO.split(",")]
        e(f"  s_setprio 3\n  s_movk_i32 s84, {a}\n  s_movk_i32 s85, 3")
    if STAMP: e("  s_mov_b32 s72, 0\n  s_mov_b32 s74, 0\n  s_mov_b32 s76, 0\n  s_memtime s[70:71]\n  s_waitcnt lgkmcnt(0)")
    e(f"""
K2_SEG:
  s_cmp_ge_u32 s59, s60
  s_cbranch_scc1 K2_DONE
  v_cmp_ge_u32 vcc, s59, v60
  s_bcnt1_i32_b32 s61, vcc_lo
  s_sub_u32 s61, s61, 1                    ; set
  s_add_u32 s62, s61, 1
  v_readlane_b32 s63, v60, s61             ; S_set
  v_readlane_b32 s64, v60, s62             ; S_set+1
  s_lshl_b32 s3, s61, 6
  v_add_u32 v8, s3, v62
  ds_read_b64 v[52:53], v8 offset:{L_SORT}
  s_min_u32 s64, s64, s60
  s_sub_u32 s65, s64, s59                  ; n
  s_sub_u32 s66, s59, s63                  ; i0
  s_mov_b32 s59, s64""")
    if STAMP: e("  s_add_u32 s67, s67, 1\n  s_add_u32 s68, s68, s65")
    e(f"""
  s_lshl_b32 s66, s66, 2
  s_waitcnt lgkmcnt(0)
  v_add_u32 v52, s66, v52
  v_add_u32_sdwa v53, v53, v61 dst_sel:DWORD dst_unused:UNUSED_PAD src0_sel:WORD_0 src1_sel:DWORD
  s_cmp_eq_u32 s66, 0
  s_nop 0
""")
    IDX = [16,18,20,22]; EE = [24,25,26,27]; T = [28,32,36,40]
    for k in range(4):
        e(f"  ds_read_u16 v{IDX[k]}, v52 offset:{4*k}")
    e(f"""  ds_read_b128 v[8:11], v53 offset:{L_P}
  s_cbranch_scc1 K2_PRIM
  v_mov_b32 v12, 0
  v_mov_b32 v13, 0
  v_mov_b32 v14, 0
  v_mov_b32 v15, 0
  s_mov_b32 s69, 0
  s_mov_b32 s79, s35
K2_CR:
  s_cmp_eq_u32 s79, 0
  s_cbranch_scc1 K2_CRD
  s_sub_u32 s79, s79, 1
  s_mul_i32 s3, s58, s79
  s_lshr_b32 s3, s3, 4
  s_cmp_gt_u32 s3, s63
  s_cbranch_scc0 K2_CRD
  s_add_u32 s69, s69, 1
  s_branch K2_CR
K2_CRD:
  s_mov_b32 s80, 1
  s_branch K2_PRIM2
K2_PRIM:
  ds_read_b128 v[12:15], v53 offset:{L_AGG}
  s_mov_b32 s80, 0
K2_PRIM2:
""")
    for k in range(4):
        e(f"  ds_read_u16_d16_hi v{EE[k]}, v52 offset:{4*k+2}")
    e("  s_cmp_eq_u32 s80, 0\n  s_cbranch_scc1 K2_PW\n  s_waitcnt lgkmcnt(5)\n  s_branch K2_PW2\nK2_PW:\n  s_waitcnt lgkmcnt(6)\nK2_PW2:")
    for k in range(4):
        e(f"  buffer_load_dwordx4 v[{T[k]}:{T[k]+3}], v[{IDX[k]}:{IDX[k]+1}], s[24:27], 0 idxen offen")
    e("  s_waitcnt lgkmcnt(0)")
    def compute(k, pre=None, mid=None):
        ep = EE[k] & ~1
        sel = "op_sel_hi:[0,1,1]" if (EE[k] & 1) == 0 else "op_sel:[1,0,0] op_sel_hi:[1,1,1]"
        t = T[k]
        e(f"  v_pk_fma_f32 v[44:45], v[{ep}:{ep+1}], v[4:5], v[8:9] {sel}")
        e(f"  v_pk_fma_f32 v[46:47], v[{ep}:{ep+1}], v[6:7], v[10:11] {sel}")
        if pre: e(pre)
        for j in range(4): e(f"  v_exp_f32 v{44+j}, v{44+j}")
        if mid: e(mid)
        for j in range(4): e(f"  v_fma_mix_f32 v{48+j}, v{t+j}, v{44+j}, 1.0 op_sel_hi:[1,0,0]")
        for j in range(4): e(f"  v_rcp_f32 v{48+j}, v{48+j}")
        e(f"  v_pk_fma_f32 v[12:13], v[48:49], v[{t}:{t+1}], v[12:13]")
        e(f"  v_pk_fma_f32 v[14:15], v[50:51], v[{t+2}:{t+3}], v[14:15]")
    if STAMP and 'ldstamp' not in EXP:
        e("""  s_cmp_lg_u32 s67, 1
  s_cbranch_scc1 K2_ST1
  s_memtime s[76:77]
  s_waitcnt vmcnt(3) lgkmcnt(0)
  s_memtime s[72:73]
  s_waitcnt lgkmcnt(0)
K2_ST1:""")
    def stage(k):
        e("  s_waitcnt vmcnt(3)")
        if "nolds" in EXP: compute(k)
        else: compute(k, pre=f"  ds_read_u16 v{IDX[k]}, v52 offset:{16+4*k}",
                   mid=f"  ds_read_u16_d16_hi v{EE[k]}, v52 offset:{16+4*k+2}")
        e("  s_waitcnt lgkmcnt(1)")
        if "nogather" not in EXP: e(f"  buffer_load_dwordx4 v[{T[k]}:{T[k]+3}], v[{IDX[k]}:{IDX[k]+1}], s[24:27], 0 idxen offen")
    e("""  s_cmp_le_u32 s65, 4
  s_cbranch_scc1 K2_TS
  s_sub_u32 s65, s65, 4
  s_cmp_lt_u32 s65, 4
  s_cbranch_scc1 K2_CHK""")
    lab("K2_RING")
    for k in range(4):
        stage(k)
    e("  v_add_u32 v52, 16, v52")
    if PRIO:
        e("  s_sub_u32 s84, s84, 4\n  s_cbranch_scc1 K2_PRIO\nK2_PRIOR:")
    e("""  s_sub_u32 s65, s65, 4
  s_cmp_ge_u32 s65, 4
  s_cbranch_scc1 K2_RING""")
    lab("K2_CHK")
    e("  s_cmp_eq_u32 s65, 0\n  s_cbranch_scc1 K2_T0")
    for k in range(3):
        stage(k)
        if k < 2: e(f"  s_cmp_eq_u32 s65, {k+1}\n  s_cbranch_scc1 K2_T{k+1}")
    for ent in (3,0,1,2):
        lab(f"K2_T{ent}")
        e("  s_waitcnt lgkmcnt(0)")
        for j in range(4):
            k = (ent+j) % 4
            e(f"  s_waitcnt vmcnt({3-j})")
            compute(k)
        e("  s_branch K2_FLUSH")
    lab("K2_TS")
    for j in range(4):
        e(f"  s_waitcnt vmcnt({3-j})")
        compute(j)
        if j < 3: e(f"  s_cmp_eq_u32 s65, {j+1}\n  s_cbranch_scc1 K2_FLUSH")
    lab("K2_FLUSH")
    if STAMP and 'ldstamp' not in EXP:
        e("""  s_cmp_lg_u32 s67, 1
  s_cbranch_scc1 K2_ST2
  s_memtime s[74:75]
  s_waitcnt lgkmcnt(0)
K2_ST2:""")
    e(f"""
  s_cmp_eq_u32 s80, 0
  s_cbranch_scc0 K2_FLC
  ds_write_b128 v53, v[12:15] offset:{L_AGG}
  s_branch K2_SEG
K2_FLC:
  v_mov_b32 v54, v12
  v_mov_b32 v55, v13
  v_mov_b32 v56, v14
  v_mov_b32 v57, v15
  v_mov_b32 v58, v53
  s_add_u32 s81, s69, 1
  v_mov_b32 v8, s81
  v_mov_b32 v9, {L_FLAG+4}
  ds_max_u32 v9, v8
  s_branch K2_SEG
""")
    if PRIO:
        e(f"""K2_PRIO:
  s_sub_u32 s85, s85, 1
  s_cmp_eq_u32 s85, 2
  s_cbranch_scc0 K2_PRIO1
  s_setprio 2
  s_movk_i32 s84, {b_}
  s_branch K2_PRIOR
K2_PRIO1:
  s_cmp_eq_u32 s85, 1
  s_cbranch_scc0 K2_PRIO0
  s_setprio 1
  s_movk_i32 s84, {c_}
  s_branch K2_PRIOR
K2_PRIO0:
  s_setprio 0
  s_movk_i32 s84, 0x7fff
  s_branch K2_PRIOR""")
    e(f"""
K2_DONE:
  s_waitcnt lgkmcnt(0)
""")
    stamp(6)
    if 'ldstamp' not in EXP: stampc(10); stampv(11, 67); stampv(12, 68)
    if STAMP and 'ldstamp' not in EXP:
        e("  s_sub_u32 s76, s76, s70\n  s_sub_u32 s72, s72, s70\n  s_sub_u32 s74, s74, s70")
        stampv(13, 76); stampv(14, 72); stampv(15, 74)
        e("  s_getreg_b32 s76, hwreg(HW_REG_HW_ID)"); stampv(8, 76)
    if PRIO: e("  s_setprio 0")
    e(f"""
  s_barrier                                 ; B4
  v_mov_b32 v9, {L_FLAG+4}
  ds_read_b32 v8, v9
  s_mov_b32 s82, 1
""")
    srd(48, 46, 47, N*128)
    e(f"""
  s_waitcnt lgkmcnt(0)
  v_readfirstlane_b32 s83, v8
  s_nop 3
K2_CRND:
  s_cmp_gt_u32 s82, s83
  s_cbranch_scc1 K2_EPI
  s_cmp_eq_u32 s82, s81
  s_cbranch_scc0 K2_CRN2
  ds_read_b128 v[8:11], v58 offset:{L_AGG}
  s_waitcnt lgkmcnt(0)
  v_add_f32 v8, v8, v54
  v_add_f32 v9, v9, v55
  v_add_f32 v10, v10, v56
  v_add_f32 v11, v11, v57
  ds_write_b128 v58, v[8:11] offset:{L_AGG}
  s_waitcnt lgkmcnt(0)
K2_CRN2:
  s_barrier
  s_add_u32 s82, s82, 1
  s_branch K2_CRND
K2_EPI:
  v_cmp_gt_u32 vcc, {NPB*4}, v0
  s_and_saveexec_b64 s[56:57], vcc
  s_cbranch_execz K2_END
  v_lshrrev_b32 v2, 2, v0                  ; node
  v_and_b32 v3, 3, v0                      ; part
  s_movk_i32 s3, {RS}
  v_lshlrev_b32 v1, 5, v3
  v_mad_u32_u24 v1, v2, s3, v1
  ds_read_b128 v[4:7], v1 offset:{L_AGG}
  ds_read_b128 v[8:11], v1 offset:{L_AGG+16}
  s_mul_i32 s3, s33, {NPB*128}
  s_lshl_b32 s40, s34, 6
  s_add_u32 s3, s3, s40
  v_lshlrev_b32 v2, 7, v2
  v_lshl_add_u32 v2, v3, 4, v2
  v_add_u32 v2, s3, v2
  s_mov_b32 s40, {f32bits(NLOG2E):#x}
  s_waitcnt lgkmcnt(0)
""")
    for j in range(0,8,2): e(f"  v_pk_mul_f32 v[{12+j}:{13+j}], v[{4+j}:{5+j}], s[40:41] op_sel_hi:[1,0]")
    for j in range(8): e(f"  v_exp_f32 v{12+j}, v{12+j}")
    for j in range(0,8,2): e(f"  v_pk_add_f32 v[{12+j}:{13+j}], v[{12+j}:{13+j}], 1.0 op_sel_hi:[1,0]")
    for j in range(8): e(f"  v_rcp_f32 v{12+j}, v{12+j}")
    for j in range(0,8,2): e(f"  v_pk_mul_f32 v[{4+j}:{5+j}], v[{4+j}:{5+j}], v[{12+j}:{13+j}]")
    for j in range(4): e(f"  v_cvt_pk_bf16_f32 v{20+j}, v{4+2*j}, v{5+2*j}")
    e(f"""
  buffer_store_dwordx4 v[20:23], v2, s[48:51], 0 offen
""")
    if STAMP:
        e("  s_waitcnt vmcnt(0)"); e("  s_mov_b64 exec, s[56:57]"); stamp(7)
    e("""
K2_END:
  s_endpgm
""")
    WBS = L_SLOT
    e(f"""
K2_SLOW:
  s_waitcnt lgkmcnt(0)
  s_barrier
  v_cmp_gt_u32 vcc, 256, v0
  s_and_saveexec_b64 s[56:57], vcc
  s_cbranch_execz K2_SL0
  v_lshrrev_b32 v8, 2, v0
  v_lshlrev_b32 v8, 7, v8
  v_and_b32 v9, 3, v0
  v_lshl_add_u32 v8, v9, 4, v8
  s_lshl_b32 s3, s34, 6
  s_add_u32 s3, s3, 8192
  v_add_u32 v8, s3, v8
  global_load_dwordx4 v[12:15], v8, s[44:45]
  v_lshlrev_b32 v9, 4, v0
  v_add_u32 v9, {WBS}, v9
  s_waitcnt vmcnt(0)
  ds_write_b128 v9, v[12:15]
K2_SL0:
  s_mov_b64 exec, s[56:57]
  s_waitcnt lgkmcnt(0)
  s_barrier
""")
    srd(12, 6, 7, N*128)
    e(f"""
  v_and_b32 v63, 7, v1
  v_lshlrev_b32 v63, 3, v63
  v_add_u32 v63, {WBS}, v63
  v_lshrrev_b32 v62, 3, v1                 ; group
  s_mov_b32 s58, s35                       ; cell
  s_mov_b32 s81, 0
  s_movk_i32 s65, {RS//4}
K2_SLC:
  s_cmp_ge_u32 s58, {W}
  s_cbranch_scc1 K2_DONE
  s_lshl_b32 s3, s33, 10
  s_lshl_b32 s59, s58, 2
  s_add_u32 s3, s3, s59
  s_add_u32 s3, s3, {WS_OFFS}
  v_mov_b32 v8, s3
  buffer_load_dword v9, v8, s[16:19], 0 offen
  s_waitcnt vmcnt(0)
  v_readfirstlane_b32 s60, v9
  s_nop 3
  s_lshr_b32 s61, s60, 16                  ; cnt
  s_and_b32 s60, s60, 0xffff               ; start
  s_mul_i32 s62, s58, {REC_STRIDE}
  s_mov_b32 s63, 0                         ; j0
K2_SLJ:
  s_cmp_ge_u32 s63, s61
  s_cbranch_scc1 K2_SLN
  v_add_u32 v8, s63, v62                   ; j
  v_cmp_gt_u32 vcc, s61, v8
  s_and_saveexec_b64 s[56:57], vcc
  s_cbranch_execz K2_SLX
  v_add_u32 v8, s60, v8
  v_lshl_add_u32 v8, v8, 3, s62
  buffer_load_dwordx2 v[10:11], v8, s[16:19], 0 offen
  s_waitcnt vmcnt(0)
  v_and_b32 v16, 0xffff, v10               ; src
  v_and_b32 v24, 0xffff0000, v10           ; e
  v_mad_u32_u24 v53, v11, s65, v61
  ds_read_b128 v[12:15], v53 offset:{L_P}
  buffer_load_dwordx4 v[28:31], v[16:17], s[24:27], 0 idxen offen
  v_lshlrev_b32 v18, 7, v16
  v_mov_b32 v19, v63
  v_mov_b32 v44, 0
  v_mov_b32 v45, 0
  v_mov_b32 v46, 0
  v_mov_b32 v47, 0
  s_mov_b32 s64, 0
K2_SLK:
  buffer_load_dwordx4 v[32:35], v18, s[12:15], s64 offen
""")
    for kk in range(8):
        e(f"  ds_read_b64 v[{64+2*kk}:{65+2*kk}], v19 offset:{kk*64}")
    e("  s_waitcnt vmcnt(0) lgkmcnt(0)")
    for kk in range(8):
        xr = 32 + kk//2
        if kk % 2 == 0: e(f"  v_lshlrev_b32 v36, 16, v{xr}")
        else: e(f"  v_and_b32 v36, 0xffff0000, v{xr}")
        w0, w1 = 64+2*kk, 65+2*kk
        e(f"""  v_lshlrev_b32 v37, 16, v{w0}
  v_and_b32 v38, 0xffff0000, v{w0}
  v_lshlrev_b32 v39, 16, v{w1}
  v_and_b32 v40, 0xffff0000, v{w1}
  v_fmac_f32 v44, v36, v37
  v_fmac_f32 v45, v36, v38
  v_fmac_f32 v46, v36, v39
  v_fmac_f32 v47, v36, v40""")
    e(f"""
  v_add_u32 v19, 512, v19
  s_add_u32 s64, s64, 16
  s_cmp_lt_u32 s64, 128
  s_cbranch_scc1 K2_SLK
  s_mov_b32 s3, {f32bits(NLOG2E):#x}
""")
    for j in range(4):
        e(f"  v_fma_f32 v{12+j}, v24, v{4+j}, v{12+j}")
    for j in range(4):
        e(f"  v_fma_f32 v{12+j}, v{44+j}, s3, v{12+j}")
    for j in range(4): e(f"  v_exp_f32 v{12+j}, v{12+j}")
    e("  s_nop 0")
    for j in range(4): e(f"  v_add_f32 v{12+j}, 1.0, v{12+j}")
    for j in range(4): e(f"  v_rcp_f32 v{12+j}, v{12+j}")
    e("  s_nop 0")
    for j in range(4): e(f"  v_mul_f32 v{12+j}, v{12+j}, v{28+j}")
    for j in range(4): e(f"  ds_add_f32 v53, v{12+j} offset:{L_AGG+4*j}")
    e(f"""
K2_SLX:
  s_mov_b64 exec, s[56:57]
  s_add_u32 s63, s63, 8
  s_branch K2_SLJ
K2_SLN:
  s_add_u32 s58, s58, 16
  s_branch K2_SLC
""")
```

```python
import sys, struct
NAME = "standalone__edge_featured_mpnn_egc__graph"

N = 25000; E = 800000
NB = 128; NPB = 196
W = 256; CHQ = 782
CH = CHQ*4
NQ = E//4
REC_STRIDE = CH*8
WS_RECS = 0
RECS_BYTES = W*REC_STRIDE
WS_OFFS = 0x620000
OFFS_BYTES = NB*W*4
WS_TAB = 0x640000
TROWS = 25088
HSTRIDE = TROWS*128
WS_FLAGS = WS_TAB + 2*HSTRIDE
NTW = 196
assert WS_OFFS >= RECS_BYTES and WS_TAB >= WS_OFFS+OFFS_BYTES
NLOG2E = -1.4426950408889634
def f32bits(x): return struct.unpack("<I", struct.pack("<f", x))[0]
QLIM = 14.0

out = []
def e(s=""):
    for line in s.strip("\n").split("\n"):
        out.append(line)
def lab(s): out.append(s + ":")

def srd(r, lo, hi, size, stride=0):
    e(f"  s_mov_b32 s{r}, s{lo}")
    if stride:
        e(f"  s_and_b32 s{r+1}, s{hi}, 0xffff")
        e(f"  s_or_b32 s{r+1}, s{r+1}, {stride<<16:#x}")
    else:
        e(f"  s_and_b32 s{r+1}, s{hi}, 0xffff")
    e(f"  s_mov_b32 s{r+2}, {size}")
    e(f"  s_mov_b32 s{r+3}, 0x20000")

def scan64(v):
    for sh in (1,2,4,8):
        e(f"  s_nop 1\n  v_add_u32_dpp v{v}, v{v}, v{v} row_shr:{sh} row_mask:0xf bank_mask:0xf")
    e(f"  s_nop 1\n  v_add_u32_dpp v{v}, v{v}, v{v} row_bcast:15 row_mask:0xa bank_mask:0xf")
    e(f"  s_nop 1\n  v_add_u32_dpp v{v}, v{v}, v{v} row_bcast:31 row_mask:0xc bank_mask:0xf")
    e("  s_nop 1")

K1_HIST = 0; K1_START = 512; K1_STAGE = 1024
K1_LDS = 1024 + 25088
K1_WB = 0; K1_WV = 8192; K1_FLAG = 16384
CAP = 80; SSTR = (CAP+1)*4
NSL = 200
RS = 144
L_P = 0
L_AGG = L_P + NSL*RS
L_CNT = L_AGG + NSL*RS
L_HIST = L_CNT + 1024
L_START = L_HIST + 512
L_SORT = L_START + 512
L_C = L_SORT + NSL*8
L_FLAG = L_C + 128
L_SLOT = 65536
L_WA = L_SLOT + 65536
L_WU = L_WA + 4096
K2_LDS = L_WU + 4096
assert L_FLAG + 64 <= L_SLOT
DUMMY = N
assert NSL*SSTR + 64 <= 65536
WS_USED = WS_FLAGS + 1024

ST = ""
import os
ST = os.environ.get("K1_ST", "")
FORCE_SLOW = int(os.environ.get("FORCE_SLOW", "0"))
STAMP = int(os.environ.get("STAMP", "0"))
EXP = os.environ.get("EXP", "")
WS_STAMP = 32 << 20
def stamp_init(wsreg, kidx):
    if not STAMP: return
    e(f"""  s_lshl_b32 s100, s2, 10
  s_add_u32 s100, s100, {WS_STAMP + kidx*(1<<20)}
  s_add_u32 s96, s{wsreg}, s100
  s_addc_u32 s97, s{wsreg+1}, 0
  s_and_b32 s97, s97, 0xffff
  s_mov_b32 s98, 1024
  s_mov_b32 s99, 0x20000
  v_lshrrev_b32 v126, 6, v0
  v_lshlrev_b32 v126, 2, v126""")
def stampv(i, sreg, nw=16):
    if not STAMP: return
    e(f"""  v_mov_b32 v127, s{sreg}
  buffer_store_dword v127, v126, s[96:99], 0 offen offset:{i*4*nw}""")
def stampc(i, nw=16):
    if not STAMP: return
    e(f"""  s_memtime s[100:101]
  s_waitcnt lgkmcnt(0)
  v_mov_b32 v127, s100
  buffer_store_dword v127, v126, s[96:99], 0 offen offset:{i*4*nw}""")
def stamp(i, nw=16):
    if not STAMP: return
    e(f"""  s_memrealtime s[100:101]
  s_waitcnt lgkmcnt(0)
  v_mov_b32 v127, s100
  buffer_store_dword v127, v126, s[96:99], 0 offen offset:{i*4*nw}""")


def k1():
    e(f"""
.text
.globl k1_kernel
.p2align 8
.type k1_kernel,@function
k1_kernel:
  s_cmp_ge_u32 s2, {W+NTW}
  s_cbranch_scc1 K1_END
  s_load_dwordx2 s[4:5], s[0:1], 72        ; ws
  s_cmp_ge_u32 s2, {W}
  s_cbranch_scc1 K1_TABLE
  s_load_dwordx2 s[6:7], s[0:1], 8         ; e_attr
  s_load_dwordx4 s[8:11], s[0:1], 16
  v_cmp_gt_u32 vcc, 128, v0
  s_and_saveexec_b64 s[32:33], vcc
  s_cbranch_execz K1P_Z
  v_lshlrev_b32 v1, 2, v0
  v_mov_b32 v2, 0
  ds_write_b32 v1, v2 offset:{K1_HIST}
K1P_Z:
  s_mov_b64 exec, s[32:33]
  s_mul_i32 s3, s2, {CHQ}
  v_add_u32 v1, s3, v0                     ; q0 = w*CHQ + t
  v_add_u32 v2, 512, v1                    ; q1
  s_mov_b32 s34, {NQ}
  v_cmp_gt_u32 s[36:37], s34, v1
  v_cmp_gt_u32 s[38:39], s34, v2
  v_cmp_gt_u32 vcc, {CHQ-512}, v0
  s_and_b64 s[38:39], s[38:39], vcc
  s_waitcnt lgkmcnt(0)
""")
    stamp_init(4, 0); stamp(0)
    srd(12, 10, 11, E*4)
    srd(16, 8, 9, E*4)
    srd(20, 6, 7, E*2)
    srd(24, 4, 5, RECS_BYTES)
    e(f"""
  s_add_u32 s40, s4, {WS_OFFS}
  s_addc_u32 s41, s5, 0
""")
    srd(28, 40, 41, OFFS_BYTES)
    e(f"""
  v_lshlrev_b32 v3, 4, v1
  v_lshlrev_b32 v24, 3, v1
  v_lshlrev_b32 v25, 4, v2
  v_lshlrev_b32 v26, 3, v2
  s_mov_b64 exec, s[36:37]
  s_cbranch_execz K1P_L0
  buffer_load_dwordx4 v[4:7], v3, s[12:15], 0 offen
  buffer_load_dwordx4 v[8:11], v3, s[16:19], 0 offen
  buffer_load_dwordx2 v[12:13], v24, s[20:23], 0 offen
K1P_L0:
  s_mov_b64 exec, s[38:39]
  s_cbranch_execz K1P_L1
  buffer_load_dwordx4 v[14:17], v25, s[12:15], 0 offen
  buffer_load_dwordx4 v[18:21], v25, s[16:19], 0 offen
  buffer_load_dwordx2 v[22:23], v26, s[20:23], 0 offen
K1P_L1:
  s_mov_b64 exec, -1
  s_waitcnt lgkmcnt(0)
  s_barrier
  s_mov_b32 s42, 5350
  s_movk_i32 s43, -{NPB}
  s_mov_b32 s44, 0xffff0000
  v_mov_b32 v27, 1
  s_waitcnt vmcnt(0)
""")
    stamp(1)
    for r,(d,s_,ee,bk,rk,m) in enumerate([(4,8,12,28,36,"s[36:37]"),(14,18,22,32,40,"s[38:39]")]):
        e(f"  s_mov_b64 exec, {m}")
        e(f"  s_cbranch_execz K1P_A{r}")
        for j in range(4):
            e(f"  v_mul_u32_u24 v{bk+j}, s42, v{d+j}")
        for j in range(4):
            e(f"  v_lshrrev_b32 v{bk+j}, 20, v{bk+j}")
        for j in range(4):
            e(f"  v_mad_i32_i24 v{d+j}, v{bk+j}, s43, v{d+j}")
        for j in range(4):
            e(f"  v_lshlrev_b32 v{bk+j}, 2, v{bk+j}")
        for j in range(4):
            e(f"  ds_add_rtn_u32 v{rk+j}, v{bk+j}, v27 offset:{K1_HIST}")
        e(f"  v_lshl_or_b32 v{s_}, v{ee}, 16, v{s_}")
        e(f"  v_and_or_b32 v{s_+1}, v{ee}, s44, v{s_+1}")
        e(f"  v_lshl_or_b32 v{s_+2}, v{ee+1}, 16, v{s_+2}")
        e(f"  v_and_or_b32 v{s_+3}, v{ee+1}, s44, v{s_+3}")
        lab(f"K1P_A{r}")
    e(f"""
  s_mov_b64 exec, -1
  s_waitcnt lgkmcnt(0)
  s_barrier
""")
    stamp(2)
    e(f"""
  v_and_b32 v1, 63, v0
  v_lshlrev_b32 v2, 3, v1
  ds_read_b64 v[44:45], v2 offset:{K1_HIST}
  s_waitcnt lgkmcnt(0)
  v_add_u32 v46, v44, v45
""")
    scan64(46)
    e(f"""
  v_sub_u32 v47, v46, v45
  v_sub_u32 v46, v47, v44                  ; start(2l)
  ds_write_b64 v2, v[46:47] offset:{K1_START}
  v_readfirstlane_b32 s3, v0
  s_nop 3
  s_lshr_b32 s3, s3, 6
  s_cmp_lg_u32 s3, 7
  s_cbranch_scc1 K1P_NOOFF
  v_lshl_or_b32 v48, v44, 16, v46
  v_lshl_or_b32 v49, v45, 16, v47
  v_lshlrev_b32 v50, 11, v1                ; (2l)*1024
  s_lshl_b32 s3, s2, 2
  v_add_u32 v50, s3, v50
  buffer_store_dword v48, v50, s[28:31], 0 offen {ST}
  buffer_store_dword v49, v50, s[28:31], 0 offen offset:1024 {ST}
K1P_NOOFF:
""")
    for r,(d,s_,ee,bk,rk,m) in enumerate([(4,8,12,28,36,"s[36:37]"),(14,18,22,32,40,"s[38:39]")]):
        e(f"  s_mov_b64 exec, {m}")
        e(f"  s_cbranch_execz K1P_B{r}")
        for j in range(4):
            e(f"  ds_read_b32 v{bk+j}, v{bk+j} offset:{K1_START}")
        e("  s_waitcnt lgkmcnt(0)")
        for j in range(4):
            e(f"  v_add_lshl_u32 v{bk+j}, v{bk+j}, v{rk+j}, 3")
        for j in range(4):
            e(f"  v_mov_b32 v{52+2*j}, v{s_+j}")
            e(f"  v_lshlrev_b32 v{53+2*j}, 2, v{d+j}")
        for j in range(4):
            e(f"  ds_write_b64 v{bk+j}, v[{52+2*j}:{53+2*j}] offset:{K1_STAGE}")
        lab(f"K1P_B{r}")
    e(f"""
  s_mov_b64 exec, -1
  s_waitcnt lgkmcnt(0)
  s_barrier
""")
    stamp(3)
    e(f"""
  v_lshlrev_b32 v1, 4, v0
  ds_read_b128 v[4:7], v1 offset:{K1_STAGE}
  ds_read_b128 v[8:11], v1 offset:{K1_STAGE+8192}
  ds_read_b128 v[12:15], v1 offset:{K1_STAGE+16384}
  s_mul_i32 s3, s2, {REC_STRIDE}
  v_add_u32 v2, s3, v1
  v_cmp_gt_u32 vcc, {1564-1536}, v0
  s_and_saveexec_b64 s[32:33], vcc
  s_cbranch_execz K1P_C0
  ds_read_b128 v[16:19], v1 offset:{K1_STAGE+24576}
  s_waitcnt lgkmcnt(0)
  v_add_u32 v3, 24576, v2
  buffer_store_dwordx4 v[16:19], v3, s[24:27], 0 offen {ST}
K1P_C0:
  s_mov_b64 exec, s[32:33]
  s_waitcnt lgkmcnt(0)
  v_add_u32 v3, 8192, v2
  v_add_u32 v20, 16384, v2
  buffer_store_dwordx4 v[4:7], v2, s[24:27], 0 offen {ST}
  buffer_store_dwordx4 v[8:11], v3, s[24:27], 0 offen {ST}
  buffer_store_dwordx4 v[12:15], v20, s[24:27], 0 offen {ST}
""")
    if STAMP:
        stamp(4); e("  s_waitcnt vmcnt(0)"); stamp(5)
    e("  s_endpgm")
    e(f"""
K1_TABLE:
  s_load_dwordx2 s[6:7], s[0:1], 0         ; x
  s_load_dwordx4 s[8:11], s[0:1], 40       ; v_w, g_w
  s_sub_u32 s35, s2, {W}
  v_readfirstlane_b32 s3, v0
  v_mov_b32 v2, 0
  v_mov_b32 v1, {K1_FLAG}
  ds_write_b32 v1, v2
  s_lshr_b32 s36, s3, 6                    ; wave
  s_and_b32 s37, s36, 1                    ; h
  s_lshr_b32 s36, s36, 1
  s_waitcnt lgkmcnt(0)
""")
    stamp_init(4, 0); stamp(0)
    srd(12, 6, 7, N*128)
    srd(16, 8, 9, 8192)
    srd(20, 10, 11, 129*128)
    e(f"""
  s_add_u32 s40, s4, {WS_TAB}
  s_addc_u32 s41, s5, 0
""")
    srd(24, 40, 41, 2*HSTRIDE)
    e(f"""
  s_add_u32 s40, s4, {WS_FLAGS}
  s_addc_u32 s41, s5, 0
""")
    srd(28, 40, 41, NTW*4)
    e(f"""
  v_lshlrev_b32 v1, 4, v0
  v_add_u32 v2, 8192, v1
  buffer_load_dwordx4 v[4:7], v2, s[20:23], 0 offen
  buffer_load_dwordx4 v[8:11], v1, s[16:19], 0 offen
  v_and_b32 v3, 63, v0                     ; lane
  v_and_b32 v12, 31, v3
  s_lshl_b32 s3, s35, 2
  s_add_u32 s3, s3, s36
  s_lshl_b32 s38, s3, 5
  v_add_u32 v13, s38, v12
  v_lshlrev_b32 v13, 7, v13
  v_lshrrev_b32 v14, 5, v3
  v_lshl_add_u32 v13, v14, 4, v13
""")
    for ks in range(4):
        e(f"  buffer_load_dwordx4 v[{16+4*ks}:{19+4*ks}], v13, s[12:15], 0 offen offset:{32*ks}")
    e(f"""
  s_waitcnt vmcnt(4)
  ds_write_b128 v1, v[4:7] offset:{K1_WB}
  ds_write_b128 v1, v[8:11] offset:{K1_WV}
  v_lshlrev_b32 v15, 3, v14                ; 8*(l>>5)
  v_bfe_u32 v4, v3, 2, 2
  v_add_u32 v15, v15, v4
  v_lshlrev_b32 v15, 7, v15
  v_bfe_u32 v4, v3, 4, 1
  v_lshl_add_u32 v15, v4, 5, v15
  v_and_b32 v4, 3, v3
  v_lshl_add_u32 v15, v4, 3, v15
  s_lshl_b32 s3, s37, 6
  v_add_u32 v15, s3, v15
  s_waitcnt lgkmcnt(0)
  s_barrier
""")
    stamp(1)
    for m,(base,lds) in enumerate([(32,K1_WB),(48,K1_WV)]):
        for ks in range(4):
            e(f"  ds_read_b64_tr_b16 v[{base+4*ks}:{base+4*ks+1}], v15 offset:{lds+ks*2048}")
            e(f"  ds_read_b64_tr_b16 v[{base+4*ks+2}:{base+4*ks+3}], v15 offset:{lds+ks*2048+512}")
    e("  s_waitcnt vmcnt(0) lgkmcnt(0)")
    DQ, DV = 64, 80
    for ks in range(4):
        c = "0" if ks == 0 else f"v[{DQ}:{DQ+15}]"
        e(f"  v_mfma_f32_32x32x16_bf16 v[{DQ}:{DQ+15}], v[{16+4*ks}:{19+4*ks}], v[{32+4*ks}:{35+4*ks}], {c}")
    for ks in range(4):
        c = "0" if ks == 0 else f"v[{DV}:{DV+15}]"
        e(f"  v_mfma_f32_32x32x16_bf16 v[{DV}:{DV+15}], v[{16+4*ks}:{19+4*ks}], v[{48+4*ks}:{51+4*ks}], {c}")
    e(f"""
  s_mul_i32 s3, s37, {HSTRIDE}
  s_lshl_b32 s39, s38, 7
  s_add_u32 s3, s3, s39
  v_lshlrev_b32 v4, 9, v14
  v_lshl_add_u32 v4, v12, 2, v4
  v_add_u32 v4, s3, v4
  s_mov_b32 s40, {f32bits(NLOG2E):#x}
  s_mov_b32 s41, 0x7fffffff
  s_mov_b32 s42, 0x7fff0000
  s_mov_b32 s43, 0x80000000
  v_mov_b32 v5, 0
  s_nop 7
  s_nop 7
""")
    for r in range(16):
        e(f"  v_mul_f32 v{DQ+r}, s40, v{DQ+r}")
    for r in range(0,16,2):
        e(f"  v_max3_f32 v5, |v{DQ+r}|, |v{DQ+r+1}|, v5")
    for r in range(16):
        e(f"  v_exp_f32 v{DQ+r}, v{DQ+r}")
    e("  s_nop 0")
    for r in range(16):
        e(f"  v_cvt_f16_f32 v{DQ+r}, v{DQ+r}")
    for r in range(16):
        e(f"  v_and_b32 v{16+r}, s41, v{DV+r}")
    for r in range(16):
        e(f"  v_add_u32 v{16+r}, 0x8000, v{16+r}")
    for r in range(16):
        e(f"  v_sub_u32_e64 v{16+r}, v{16+r}, v{DQ+r} clamp")
    for r in range(16):
        e(f"  v_and_or_b32 v{16+r}, v{16+r}, s42, v{DQ+r}")
    for r in range(16):
        e(f"  v_and_or_b32 v{16+r}, v{DV+r}, s43, v{16+r}")
    for r in range(16):
        off = (8*(r>>2) + (r&3))*128
        e(f"  buffer_store_dword v{16+r}, v4, s[24:27], 0 offen offset:{off} {ST}")
    if STAMP:
        stamp(4); e("  s_waitcnt vmcnt(0)"); stamp(5)
    e(f"""
  v_mov_b32 v6, {f32bits(QLIM):#x}
  v_cmp_nle_f32 vcc, v5, v6
  s_cbranch_vccz K1T_OK
  v_mov_b32 v2, 1
  v_mov_b32 v1, {K1_FLAG}
  ds_write_b32 v1, v2
K1T_OK:
  s_waitcnt lgkmcnt(0)
  s_barrier
  v_cmp_eq_u32 vcc, 0, v0
  s_and_saveexec_b64 s[32:33], vcc
  s_cbranch_execz K1_END
  v_mov_b32 v1, {K1_FLAG}
  ds_read_b32 v2, v1
  s_lshl_b32 s3, s35, 2
  v_mov_b32 v3, s3
  s_waitcnt lgkmcnt(0)
  buffer_store_dword v2, v3, s[28:31], 0 offen {ST}
K1_END:
  s_endpgm
""")

import k2gen
k2 = k2gen.k2

def descr(name, vgpr, sgpr):
    e(f"""
.section .rodata,"a"
.p2align 6
.amdhsa_kernel {name}
  .amdhsa_next_free_vgpr {vgpr}
  .amdhsa_next_free_sgpr {sgpr}
  .amdhsa_accum_offset {((vgpr+3)//4)*4}
  .amdhsa_group_segment_fixed_size 0
  .amdhsa_kernarg_size 80
  .amdhsa_user_sgpr_count 2
  .amdhsa_user_sgpr_kernarg_segment_ptr 1
  .amdhsa_system_sgpr_workgroup_id_x 1
.end_amdhsa_kernel
""")

def main():
    e(f"""; Edge-gated MPNN forward in two launches (generated by gen/gen.py; hand-designed).
; @launch kernel=k1_kernel grid=({W+NTW},1,1) block=(512,1,1) lds={K1_LDS}
; @launch kernel=k2_kernel grid=(256,1,1) block=(1024,1,1) lds={K2_LDS}
.amdgcn_target "amdgcn-amd-amdhsa--gfx950"
""")
    k1()
    k2()
    descr("k1_kernel", 128 if STAMP else 96, 102 if STAMP else 96)
    descr("k2_kernel", 128, 102 if STAMP else 100)
    path = sys.argv[1] if len(sys.argv) > 1 else f"cdna_kernels/{NAME}.s"
    open(path, "w").write("\n".join(out) + "\n")
main()
```
